```python
import torch

def _softmax(x, axis=-1):
    return torch.softmax(x, dim=axis)

def _gelu(x):
    return torch.nn.functional.gelu(x, approximate='tanh')

def _silu(x):
    return torch.nn.functional.silu(x)

def _sigmoid(x):
    return torch.sigmoid(x)

def _layernorm(x, axis=-1, eps=1e-05):
    m = x.mean(dim=axis, keepdim=True)
    v = x.var(dim=axis, keepdim=True, unbiased=False)
    return (x - m) / torch.sqrt(v + eps)

def _scatter_add(tgt, idx, src, axis=0):
    return tgt.clone().index_add_(axis, idx, src)

def _segment_sum(src, seg, n):
    out = torch.zeros((n,) + src.shape[1:], dtype=src.dtype)
    return out.index_add_(0, seg, src)

def _pad(x, pw):
    flat = tuple((v for pair in reversed(pw) for v in pair))
    return torch.nn.functional.pad(x, flat)
kernel_name = 'adaLN_cond__mha_block_cached__geglu_ffn__decode'

def setup_inputs():

    _w = lambda a: (lambda t: t.to(torch.bfloat16) if t.is_floating_point() else t)(torch.as_tensor(a))

    def _A_setup():
        B, Sq, D = (4, 1, 512)
        H, Sk, Dh = (32, 4096, 128)
        return {'x': _w((lambda *s: torch.randn(*s, dtype=torch.bfloat16) * 0.1)(B, Sq, D)), 'k_cache': _w((lambda *s: torch.randn(*s, dtype=torch.bfloat16) * 0.8)(B, H, Sk, Dh)), 'v_cache': _w((lambda *s: torch.randn(*s, dtype=torch.bfloat16) * 0.8)(B, H, Sk, Dh)), 'wq': _w((lambda *s: torch.randn(*s, dtype=torch.bfloat16) * 0.8)(D, H * Dh) * D ** (-0.5)), 'wo': _w((lambda *s: torch.randn(*s, dtype=torch.bfloat16) * 0.8)(H * Dh, D) * (H * Dh) ** (-0.5))}
    _A_in = _A_setup()

    def _B_setup():
        B, S, D, F = (4, 1, 512, 1792)
        return {'x': _w((lambda *s: torch.randn(*s, dtype=torch.bfloat16) * 0.1)(B, S, D)), 'w_gate': _w((lambda *s: torch.randn(*s, dtype=torch.bfloat16) * 0.1)(D, F)), 'w_up': _w((lambda *s: torch.randn(*s, dtype=torch.bfloat16) * 0.1)(D, F)), 'w_down': _w((lambda *s: torch.randn(*s, dtype=torch.bfloat16) * 0.1)(F, D))}
    _B_in = _B_setup()
    return {'A_x': _A_in['x'], 'A_k_cache': _A_in['k_cache'], 'A_v_cache': _A_in['v_cache'], 'A_wq': _A_in['wq'], 'A_wo': _A_in['wo'], 'B_x': _B_in['x'], 'B_w_gate': _B_in['w_gate'], 'B_w_up': _B_in['w_up'], 'B_w_down': _B_in['w_down'], 'c': _w((lambda *s: torch.randn(*s, dtype=torch.bfloat16) * 0.8)(4, 512) * 8.0), 'w_mod': _w((lambda *s: torch.randn(*s, dtype=torch.bfloat16) * 0.8)(512, 6 * 512) * 512 ** (-0.5) * 8.0)}

def reference(A_x, A_k_cache, A_v_cache, A_wq, A_wo, B_x, B_w_gate, B_w_up, B_w_down, c, w_mod):

    def _A_ref(x, k_cache, v_cache, wq, wo):
        B, Sq, D = x.shape
        H, Dh = (32, 128)
        q = (lambda x, *d: x.permute(*d))((x @ wq).reshape(B, Sq, H, Dh), 0, 2, 1, 3)
        scores = torch.einsum('bhqd,bhkd->bhqk', q, k_cache) * Dh ** (-0.5)
        p = _softmax(scores, axis=-1)
        o = torch.einsum('bhqk,bhkd->bhqd', p, v_cache)
        return (lambda x, *d: x.permute(*d))(o, 0, 2, 1, 3).reshape(B, Sq, H * Dh) @ wo

    def _B_ref(x, w_gate, w_up, w_down):
        return _gelu(x @ w_gate) * (x @ w_up) @ w_down
    x = A_x
    mod = (_silu(c) @ w_mod).reshape(c.shape[0], 6, 1, -1)
    sa, ca, ga, sb, cb, gb = (mod[:, 0].clone(), mod[:, 1].clone(), mod[:, 2].clone(), mod[:, 3].clone(), mod[:, 4].clone(), mod[:, 5].clone())
    h = _layernorm(x, axis=-1) * (1 + ca) + sa
    x = x + ga * _A_ref(h, A_k_cache, A_v_cache, A_wq, A_wo)
    h = _layernorm(x, axis=-1) * (1 + cb) + sb
    x = x + gb * _B_ref(h, B_w_gate, B_w_up, B_w_down)
    return x
```

```python
import re

_REG = re.compile(r'^(v|s|a)(\d+)$')
_RNG = re.compile(r'^(v|s|a)\[(\d+):(\d+)\]$')

def regs_of(op):
    op = op.strip()
    neg = op.startswith('-')
    if neg: op = op[1:]
    if op.startswith('abs(') and op.endswith(')'): op = op[4:-1]
    if op.startswith('|') and op.endswith('|'): op = op[1:-1]
    m = _REG.match(op)
    if m: return {(m.group(1), int(m.group(2)))}
    m = _RNG.match(op)
    if m: return {(m.group(1), i) for i in range(int(m.group(2)), int(m.group(3))+1)}
    if op == 'vcc': return {('s', 106), ('s', 107)}
    if op == 'vcc_lo': return {('s', 106)}
    if op == 'vcc_hi': return {('s', 107)}
    if op == 'exec': return {('x', 0), ('x', 1)}
    if op == 'm0': return {('m', 0)}
    return set()

TRANS = ('v_exp_f32', 'v_log_f32', 'v_rcp_f32', 'v_rsq_f32', 'v_sqrt_f32', 'v_sin_f32', 'v_cos_f32')

class Ins:
    __slots__ = ('text', 'mn', 'reads', 'writes', 'cls', 'dpp')

class Asm:
    def __init__(self):
        self.lines = []
        self.hist = []
        self.inflight = []
        self.nnop = 0
    def raw(self, s):
        self.lines.append(s)
    def comment(self, s):
        self.lines.append('  ; ' + s)
    def label(self, name):
        self.lines.append(name + ':')
        self.hist = []
    def _parse(self, text):
        t = text.strip()
        mn, _, rest = t.partition(' ')
        ops = []
        cur = ''; depth = 0
        for ch in rest:
            if ch in '[(': depth += 1
            if ch in '])': depth -= 1
            if ch == ',' and depth == 0:
                ops.append(cur.strip()); cur = ''
            else: cur += ch
        if cur.strip(): ops.append(cur.strip())
        mods = ''
        if ops:
            parts = ops[-1].split()
            if len(parts) > 1:
                ops[-1] = parts[0]; mods = ' '.join(parts[1:])
        I = Ins(); I.text = text; I.mn = mn; I.dpp = ('row_' in mods or 'quad_perm' in mods or 'wave_' in mods or mn.endswith('_dpp'))
        rd = set(); wr = set()
        R = [regs_of(o) for o in ops]
        if mn.startswith('v_cmp'):
            I.cls = 'valu'; wr |= R[0]
            for r in R[1:]: rd |= r
            if mn.startswith('v_cmpx'): wr |= {('x',0),('x',1)}
        elif mn.startswith('v_permlane') and 'swap' in mn:
            I.cls = 'permlane'; wr |= R[0] | R[1]; rd |= R[0] | R[1]
        elif mn in ('v_readlane_b32', 'v_readfirstlane_b32'):
            I.cls = 'readlane'; wr |= R[0]
            for r in R[1:]: rd |= r
        elif mn.startswith('v_'):
            I.cls = 'valu'
            if mn.startswith('v_dot2'): I.cls = 'dot'
            if mn.split('_e')[0] in TRANS or mn in TRANS: I.cls = 'trans'
            wr |= R[0]
            for r in R[1:]: rd |= r
            base = mn.replace('_e32','').replace('_e64','').replace('_dpp','')
            if base in ('v_fmac_f32', 'v_dot2c_f32_bf16', 'v_pk_fmac_f16', 'v_fmac_f16'): rd |= R[0]
            if base in ('v_cndmask_b32',) and len(ops) == 3: rd |= {('s',106),('s',107)}
            if base in ('v_add_co_u32','v_sub_co_u32','v_addc_co_u32','v_subb_co_u32'):
                wr |= R[1]
        elif mn.startswith('ds_'):
            I.cls = 'ds'
            if 'read' in mn or 'bpermute' in mn or 'permute' in mn or 'swizzle' in mn:
                wr |= R[0]
                for r in R[1:]: rd |= r
            else:
                for r in R: rd |= r
        elif mn.startswith('buffer_') or mn.startswith('global_') or mn.startswith('flat_'):
            I.cls = 'vmem'
            lds = ' lds' in (' ' + mods) or mn.startswith('global_load_lds')
            if 'load' in mn and not lds:
                wr |= R[0]
                for r in R[1:]: rd |= r
            elif 'atomic' in mn and ('sc0' in mods.split()) and mn.startswith('global_'):
                wr |= R[0]
                for r in R[1:]: rd |= r
            else:
                for r in R: rd |= r
                if lds: rd |= {('m',0)}
                if 'atomic' in mn and 'sc0' in mods.split(): wr |= R[0]
        elif mn.startswith('s_'):
            I.cls = 'salu'
            if mn.startswith('s_load') or mn.startswith('s_buffer_load'):
                I.cls = 'smem'; wr |= R[0]
                for r in R[1:]: rd |= r
            elif mn.startswith('s_cmp') or mn in ('s_waitcnt','s_nop','s_barrier','s_sleep','s_branch','s_endpgm','s_setprio') or mn.startswith('s_cbranch'):
                for r in R: rd |= r
            else:
                if R: wr |= R[0]
                for r in R[1:]: rd |= r
                if 'saveexec' in mn: wr |= {('x',0),('x',1)}
        else:
            I.cls = 'other'
        I.reads = rd; I.writes = wr
        return I
    def _need(self, I):
        need = 0
        dist = 0
        for (P, slots) in reversed(self.hist):
            if P is not None:
                w = P.writes
                def hit(s): return bool(w & s)
                req = 0
                pv = P.cls in ('valu','trans','dot','permlane','readlane')
                vw = {r for r in w if r[0] in ('v','a')}
                sw = {r for r in w if r[0] == 's'}
                if pv:
                    if I.dpp and (vw & I.reads): req = max(req, 2)
                    if I.cls == 'permlane' and (vw & I.reads): req = max(req, 2)
                    if I.cls == 'readlane' and (vw & I.reads): req = max(req, 1)
                    if P.cls == 'trans' and (vw & (I.reads | I.writes)) and I.cls != 'trans': req = max(req, 1)
                    if P.cls == 'dot' and (vw & (I.reads | I.writes)):
                        if I.cls == 'dot' and I.mn == P.mn:
                            I_ops_ab = self._ab_reads(I)
                            if vw & I_ops_ab: req = max(req, 3)
                        else: req = max(req, 3)
                    if sw:
                        if I.cls in ('valu','trans','dot','permlane','readlane') and (sw & I.reads): req = max(req, 2)
                        if I.cls == 'readlane' and (sw & I.reads): req = max(req, 4)
                        if I.cls == 'vmem' and (sw & I.reads): req = max(req, 5)
                        if I.cls in ('salu',) and (sw & I.reads): req = max(req, 2)
                    if ('x',0) in w and I.cls in ('readlane',): req = max(req, 4)
                    if ('x',0) in w and I.dpp: req = max(req, 5)
                if P.cls == 'salu' and ('m',0) in w and ('m',0) in I.reads: req = max(req, 1)
                if P.cls == 'vmem' and ('store' in P.mn) and ('x3' in P.mn or 'x4' in P.mn):
                    if I.cls in ('valu','trans','dot','permlane','readlane') and ({r for r in P.reads if r[0]=='v'} & I.writes): req = max(req, 2)
                need = max(need, req - dist)
            dist += slots
            if dist >= 6: break
        return max(need, 0)
    def _ab_reads(self, I):
        t = I.text.strip(); _, _, rest = t.partition(' ')
        ops = [o.strip() for o in rest.split(',')]
        return regs_of(ops[1]) | regs_of(ops[2])
    def __call__(self, text):
        for line in text.split('\n'):
            line = line.strip()
            if not line: continue
            if line.startswith(';'):
                self.lines.append('  ' + line); continue
            I = self._parse(line)
            n = self._need(I)
            if n > 0:
                self.lines.append(f'  s_nop {n-1}')
                self.hist.append((None, n)); self.nnop += 1
            self.lines.append('  ' + line)
            slots = 1
            if I.mn == 's_nop':
                slots = int(line.split()[1], 0) + 1
            self.hist.append((I, slots))
            if len(self.hist) > 12: self.hist = self.hist[-12:]
    def nop(self, n):
        self(f's_nop {n-1}')
    def vm_issue(self, text, tag):
        self(text)
        self.inflight.append(tag)
    def vm_wait(self, tag):
        if tag not in self.inflight: return
        idx = self.inflight.index(tag)
        n = len(self.inflight) - 1 - idx
        assert n <= 63
        self(f's_waitcnt vmcnt({n})')
        self.inflight = self.inflight[idx+1:]
    def vm_wait_all(self):
        self('s_waitcnt vmcnt(0)')
        self.inflight = []
    def text(self):
        return '\n'.join(self.lines) + '\n'
```

```python
from gen import *

def unpack8(A, d, t):
    for k in range(4):
        A(f'v_lshlrev_b32 v{t+2*k}, 16, v{d+k}')
        A(f'v_and_b32 v{t+2*k+1}, 0xffff0000, v{d+k}')

def poll(A, name, srdn, voff, target, nshard_mask_reg=None, limit=200000):
    A('s_mov_b32 s20, 0')
    A.label(f'L_{name}')
    A('s_nop 1')
    A(f'buffer_load_dword v126, v{voff}, {srd(srdn)}, 0 offen sc1')
    A('s_waitcnt vmcnt(0)')
    A(f'v_cmp_eq_u32 vcc, {target}, v126')
    A('s_nop 3')
    A('s_cmp_eq_u64 vcc, -1')
    A(f's_cbranch_scc1 L_{name}_ok')
    A('s_add_u32 s20, s20, 1')
    A(f's_cmp_ge_u32 s20, {limit}')
    A(f's_cbranch_scc1 L_{name}_ok')
    A('s_sleep 1')
    A(f's_branch L_{name}')
    A.label(f'L_{name}_ok')
    A('s_nop 1')

def silu(A, x, t0, t1, t2):
    A(f'v_mul_f32 v{t0}, 0xbfb8aa3b, v{x}')
    A(f'v_min_f32 v{t0}, 0x42fc0000, v{t0}')
    A(f'v_exp_f32 v{t0}, v{t0}')
    A(f'v_add_f32 v{t0}, 1.0, v{t0}')
    fdiv(A, x, x, t0, t1, t2) if False else None
    A(f'v_rcp_f32 v{t1}, v{t0}')
    A(f'v_fma_f32 v{t2}, -v{t0}, v{t1}, 1.0')
    A(f'v_fma_f32 v{t1}, v{t2}, v{t1}, v{t1}')
    A(f'v_mul_f32 v{t2}, v{x}, v{t1}')
    A(f'v_mov_b32 v{x}, v{t2}')
    bf16r(A, x)

def prologue(g, service):
    A = g.A; D = g.D
    tag = f'{"s" if service else "n"}'
    A('v_lshrrev_b32 v3, 4, v1')
    A('v_and_b32 v4, 15, v1')
    A(f's_sub_u32 s18, s2, {WORK0}')
    A(f's_cmp_lt_u32 s18, {NWORK}')
    A(f's_cbranch_scc0 L_p2_{tag}')
    A('v_lshrrev_b32 v120, 2, v1')
    A('v_mul_u32_u24 v120, 3584, v120')
    A('v_and_b32 v122, 3, v1')
    A('v_lshl_add_u32 v120, v122, 4, v120')
    A(f's_mul_i32 s16, s3, {32*3584}')
    A('s_lshl_b32 s17, s18, 6')
    A('s_add_u32 s16, s16, s17')
    A('s_lshl_b32 s19, s3, 11')
    for nm, lb in (('gate', L_GATE), ('up', L_UP)):
        for i in range(2):
            A(f's_add_u32 s17, s16, {i*16*3584}')
            A(f's_add_u32 s21, s19, {lb + i*1024}')
            A('s_mov_b32 m0, s21')
            A.vm_issue(f'buffer_load_dwordx4 v120, {srd(nm)}, s17 offen lds', f'dma_{nm}{i}')
    A('s_lshl_b32 s17, s18, 15')
    A('s_add_u32 s17, s17, s19')
    for i in range(2):
        A(f's_add_u32 s22, s17, {i*1024}')
        A(f's_add_u32 s21, s19, {L_DOWN + i*1024}')
        A('s_mov_b32 m0, s21')
        A.vm_issue(f'buffer_load_dwordx4 v2, {srd("down")}, s22 offen lds', f'dma_dn{i}')
    A.label(f'L_p2_{tag}')
    A(f's_cmp_lt_u32 s2, {NPROD}')
    A(f's_cbranch_scc0 L_p1_{tag}')
    A('v_lshlrev_b32 v120, 2, v0')
    A.vm_issue(f'buffer_load_dword v121, v120, {srd("c")}, 0 offen', 'c')
    A('v_mul_u32_u24 v120, 6144, v3')
    A('v_lshl_add_u32 v120, v4, 2, v120')
    A(f's_mul_i32 s16, s3, {32*6144}')
    A('s_lshl_b32 s17, s2, 6')
    A('s_add_u32 s16, s16, s17')
    for i in range(8):
        A(f's_add_u32 s17, s16, {i*4*6144}')
        A.vm_issue(f'buffer_load_dword v{112+i}, v120, {srd("wmod")}, s17 offen', f'wm{i}')
    A.label(f'L_p1_{tag}')
    A('v_lshlrev_b32 v120, 13, v3')
    A('v_lshl_add_u32 v120, v4, 4, v120')
    A('s_lshl_b32 s16, s3, 18')
    A(f's_lshl_b32 s17, s{S_H}, 8')
    A('s_add_u32 s16, s16, s17')
    for i in range(8):
        A(f's_add_u32 s17, s16, {i*4*8192}')
        A.vm_issue(f'buffer_load_dwordx4 v[{16+4*i}:{19+4*i}], v120, {srd("wq")}, s17 offen', f'wq{i}')
    if not service:
        for j in range(D):
            ring_issue(g, j)

def ring_tagname(j): return f'r{j}'
NK = 32
def ring_seq(j):
    if j < NK: return ('K', j)
    if j < 2*NK: return ('V', j-NK)
    return ('W', j-2*NK)
NSTREAM = 2*NK + 8

def ring_issue(g, j):
    A = g.A; D = g.D
    kind, i = ring_seq(j)
    r = 48 + 4*(j % D)
    if kind in 'KV':
        A(f's_add_u32 s17, s{S_KV}, {i*1024}')
        A.vm_issue(f'buffer_load_dwordx4 v[{r}:{r+3}], v2, {srd(kind)}, s17 offen nt', ring_tagname(j))
    else:
        A(f's_lshl_b32 s17, s{S_H}, 17')
        A('s_lshl_b32 s18, s3, 13')
        A('s_add_u32 s17, s17, s18')
        A(f's_add_u32 s17, s17, {i*1024}')
        A.vm_issue(f'buffer_load_dwordx4 v[{r}:{r+3}], v2, {srd("wo")}, s17 offen', ring_tagname(j))

def mod_phase(g, service):
    A = g.A
    tag = f'{"s" if service else "n"}'
    A(f's_cmp_lt_u32 s2, {NPROD}')
    A(f's_cbranch_scc0 L_m_end_{tag}')
    A.vm_wait('c')
    A('v_lshlrev_b32 v122, 16, v121')
    A('v_and_b32 v123, 0xffff0000, v121')
    silu(A, 122, 124, 125, 126)
    silu(A, 123, 124, 125, 126)
    A('v_and_b32 v124, 255, v0')
    A('v_lshlrev_b32 v124, 5, v124')
    A('v_lshrrev_b32 v125, 8, v0')
    A('v_lshl_add_u32 v124, v125, 2, v124')
    A(f'v_add_u32 v124, {L_ACT}, v124')
    A('ds_write_b32 v124, v122')
    A('ds_write_b32 v124, v123 offset:16')
    A('s_waitcnt lgkmcnt(0)')
    A('s_barrier')
    for k in range(8): A(f'v_mov_b32 v{4+k}, 0')
    A('s_lshl_b32 s16, s3, 9')
    A('v_lshlrev_b32 v124, 4, v3')
    A(f'v_add_u32 v124, s16, v124')
    A(f'v_add_u32 v124, {L_ACT}, v124')
    for i in range(8):
        A(f'ds_read_b128 v[12:15], v124 offset:{i*64}')
        A.vm_wait(f'wm{i}')
        A(f'v_lshlrev_b32 v122, 16, v{112+i}')
        A(f'v_and_b32 v123, 0xffff0000, v{112+i}')
        A('s_waitcnt lgkmcnt(0)')
        for b in range(4):
            A(f'v_fmac_f32 v{4+2*b}, v{12+b}, v122')
            A(f'v_fmac_f32 v{5+2*b}, v{12+b}, v123')
    allreduce_xrow(A, list(range(4, 12)), list(range(120, 128)))
    A('v_and_b32 v124, 15, v1')
    A('v_lshlrev_b32 v124, 3, v124')
    A('s_lshl_b32 s16, s3, 9')
    A(f's_add_u32 s16, s16, {L_RED}')
    A('v_add_u32 v124, s16, v124')
    for b in range(4):
        A(f'ds_write_b64 v124, v[{4+2*b}:{5+2*b}] offset:{b*128}')
    A('s_waitcnt lgkmcnt(0)')
    A('s_barrier')
    if service:
        A('v_lshlrev_b32 v124, 7, v3')
        A('v_and_b32 v125, 15, v1')
        A('v_lshl_add_u32 v124, v125, 3, v124')
        A(f'v_add_u32 v124, {L_RED}, v124')
        A('ds_read_b64 v[4:5], v124')
        for w in range(1, 16):
            A(f'ds_read_b64 v[{8+2*(w%4)}:{9+2*(w%4)}], v124 offset:{w*512}')
            if w % 4 == 0 or w == 15:
                A('s_waitcnt lgkmcnt(0)')
                lo = (w-3 if w % 4 == 0 else 13)
                for ww in range(lo, w+1):
                    A(f'v_add_f32 v4, v4, v{8+2*(ww%4)}')
                    A(f'v_add_f32 v5, v5, v{9+2*(ww%4)}')
        A('v_cvt_pk_bf16_f32 v4, v4, v5')
        A('v_mul_u32_u24 v124, 6144, v3')
        A('v_and_b32 v125, 15, v1')
        A('v_lshl_add_u32 v124, v125, 2, v124')
        A('s_lshl_b32 s16, s2, 6')
        A(f'buffer_store_dword v4, v124, {srd("ws")}, s16 offen sc1')
        A('v_mov_b32 v8, 0\nv_mov_b32 v9, 0\nv_mov_b32 v10, 0\nv_mov_b32 v11, 0')
        A('s_lshl_b32 s16, s2, 8')
        A(f's_add_u32 s16, s16, {WS_EXCH}')
        A('s_mov_b64 exec, 0xffff')
        A(f'buffer_store_dwordx4 v[8:11], v2, {srd("ws")}, s16 offen sc1')
        A('s_mov_b64 exec, -1')
        A('s_waitcnt vmcnt(0)')
        A('s_and_b32 s16, s2, 3')
        A('s_lshl_b32 s16, s16, 6')
        A('v_mov_b32 v8, 1')
        A('v_mov_b32 v9, 0')
        A('s_mov_b64 exec, 1')
        A(f'buffer_atomic_add v8, v9, {srd("dbg")}, s16 offen')
        A('s_mov_b64 exec, -1')
    A.label(f'L_m_end_{tag}')
    A('s_nop 1')

def h_phase(g, service):
    A = g.A
    if service:
        A('v_and_b32 v125, 3, v1')
        A('v_lshlrev_b32 v125, 6, v125')
        poll(A, 'f0', 'dbg', 125, 24)
        A(f's_lshl_b32 s16, s{S_B}, 10')
        A(f'buffer_load_dwordx4 v[48:51], v2, {srd("x")}, s16 offen')
        A(f's_mul_i32 s16, s{S_B}, 6144')
        A(f'buffer_load_dwordx4 v[52:55], v2, {srd("ws")}, s16 offen sc1')
        A(f'buffer_load_dwordx4 v[56:59], v2, {srd("ws")}, s16 offen offset:1024 sc1')
        A('s_waitcnt vmcnt(0)')
        unpack8(A, 48, 64)
        unpack8(A, 52, 72)
        unpack8(A, 56, 80)
        layernorm(A, 64, 88)
        for k in range(8):
            A(f'v_add_f32 v{80+k}, 1.0, v{80+k}')
        for k in range(8): bf16r(A, 80+k)
        for k in range(8): A(f'v_mul_f32 v{64+k}, v{64+k}, v{80+k}')
        for k in range(8): bf16r(A, 64+k)
        for k in range(8): A(f'v_add_f32 v{64+k}, v{64+k}, v{72+k}')
        for k in range(8): bf16r(A, 64+k)
        A('v_lshlrev_b32 v124, 5, v1')
        A(f'v_add_u32 v124, {L_ACT}, v124')
        A('ds_write_b128 v124, v[64:67]')
        A('ds_write_b128 v124, v[68:71] offset:16')
        A('s_waitcnt lgkmcnt(0)')
    A('s_barrier')

def layernorm(A, x, t):
    s = t; m = t+1; d0 = t+2
    A(f'v_add_f32 v{s}, v{x}, v{x+1}')
    for k in range(2, 8): A(f'v_add_f32 v{s}, v{s}, v{x+k}')
    allreduce_row(A, [s]); allreduce_xrow(A, [s], [t+10])
    A(f'v_mul_f32 v{m}, 0x3b000000, v{s}')
    for k in range(8): A(f'v_sub_f32 v{d0+k}, v{x+k}, v{m}')
    A(f'v_mul_f32 v{s}, v{d0}, v{d0}')
    for k in range(1, 8): A(f'v_fmac_f32 v{s}, v{d0+k}, v{d0+k}')
    allreduce_row(A, [s]); allreduce_xrow(A, [s], [t+10])
    A(f'v_mul_f32 v{s}, 0x3b000000, v{s}')
    bf16r(A, s)
    A(f'v_add_f32 v{s}, 0x3727c5ac, v{s}')
    bf16r(A, s)
    A(f'v_sqrt_f32 v{s}, v{s}')
    bf16r(A, s)
    bf16r(A, m)
    for k in range(8): A(f'v_sub_f32 v{d0+k}, v{x+k}, v{m}')
    for k in range(8): bf16r(A, d0+k)
    for k in range(8):
        fdiv(A, x+k, d0+k, s, t+10, t+11)
    for k in range(8): bf16r(A, x+k)

def q_phase(g, service):
    A = g.A
    A('s_lshl_b32 s16, s3, 7')
    A(f's_add_u32 s16, s16, {L_ACT}')
    A('v_lshlrev_b32 v8, 2, v3')
    A('v_add_u32 v8, s16, v8')
    for i in range(8): A(f'ds_read_b32 v{120+i}, v8 offset:{16*i}')
    for k in range(8): A(f'v_mov_b32 v{8+k}, 0')
    A('s_waitcnt lgkmcnt(0)')
    for i in range(8):
        A.vm_wait(f'wq{i}')
        unpack8(A, 16+4*i, 112)
        for k in range(8): A(f'v_fmac_f32 v{8+k}, v{120+i}, v{112+k}')
    allreduce_xrow(A, list(range(8, 16)), list(range(112, 120)))
    A('s_lshl_b32 s16, s3, 9')
    A(f's_add_u32 s16, s16, {L_RED}')
    A('v_and_b32 v112, 15, v1')
    A('v_lshlrev_b32 v112, 5, v112')
    A('v_add_u32 v112, s16, v112')
    A('ds_write_b128 v112, v[8:11]')
    A('ds_write_b128 v112, v[12:15] offset:16')
    A('s_waitcnt lgkmcnt(0)')
    A('s_barrier')
    A('v_and_b32 v112, 15, v1')
    A('v_lshlrev_b32 v112, 5, v112')
    A(f'v_add_u32 v112, {L_RED}, v112')
    A('ds_read_b128 v[8:11], v112')
    A('ds_read_b128 v[12:15], v112 offset:16')
    for w in range(1, 16):
        base = 16 + 8*((w-1) % 4)
        A(f'ds_read_b128 v[{base}:{base+3}], v112 offset:{w*512}')
        A(f'ds_read_b128 v[{base+4}:{base+7}], v112 offset:{w*512+16}')
        if w % 4 == 0 or w == 15:
            A('s_waitcnt lgkmcnt(0)')
            lo = w-3 if w % 4 == 0 else 13
            for ww in range(lo, w+1):
                bb = 16 + 8*((ww-1) % 4)
                for k in range(8): A(f'v_add_f32 v{8+k}, v{8+k}, v{bb+k}')
    for k in range(4): A(f'v_cvt_pk_bf16_f32 v{4+k}, v{8+2*k}, v{9+2*k}')

def dump_regs(A, regs, idx, lanes=64):
    A('s_lshl_b32 s16, s2, 4')
    A('s_add_u32 s16, s16, s3')
    A(f's_mul_i32 s16, s16, {len(regs)*256}')
    A(f's_add_u32 s16, s16, {WS_DBG}')
    A('v_lshlrev_b32 v3, 2, v1')
    for k, r in enumerate(regs):
        A(f'buffer_store_dword v{r}, v3, {srd("ws")}, s16 offen offset:{k*256}')
    A('s_waitcnt vmcnt(0)')

def body(g):
    A = g.A
    A('s_cmp_eq_u32 s3, 15')
    A('s_cbranch_scc1 L_service')
    for service in (False, True):
        if service: A.label('L_service')
        A.inflight = []
        prologue(g, service)
        mod_phase(g, service)
        h_phase(g, service)
        q_phase(g, service)
        if g.stop == 1:
            dump_regs(A, [4,5,6,7], 0)
            A('s_branch L_END')
            continue
        import stream
        stream.run(g, service)
    if g.stop > 2:
        import worker
        worker.run(g)
```

```python
from gen import *
from phases import unpack8, ring_issue, ring_seq, ring_tagname, NK, NSTREAM, poll, dump_regs
import phases

S0 = 16
OACC = 8

def run(g, service):
    A = g.A; D = g.D
    tag = 's' if service else 'n'
    if service:
        for j in range(D): ring_issue(g, j)
    nxt = [D]
    def issue_more(n):
        for _ in range(n):
            if nxt[0] < NSTREAM:
                ring_issue(g, nxt[0]); nxt[0] += 1
    def slot(j): return 48 + 4*(j % D)
    T = [112, 113, 114, 115]
    for g4 in range(NK//4):
        js = [4*g4+k for k in range(4)]
        A.vm_wait(ring_tagname(js[3]))
        for k in range(4):
            for u, j in enumerate(js):
                src = 'v%d' % T[u] if k else '0'
                A(f'v_dot2_f32_bf16 v{T[u]}, v{slot(j)+k}, v{4+k}, {src}')
        issue_more(4)
        for sh in (8, 4, 2):
            for u in range(4):
                A(f'v_add_f32_dpp v{T[u]}, v{T[u]}, v{T[u]} row_ror:{sh} row_mask:0xf bank_mask:0xf')
        for u, j in enumerate(js):
            A(f'v_add_f32_dpp v{S0+j}, v{T[u]}, v{T[u]} row_ror:1 row_mask:0xf bank_mask:0xf')
    A(f's_mov_b32 s16, {SCALE:#x}')
    for i in range(NK):
        A(f'v_cvt_pk_bf16_f32 v{S0+i}, v{S0+i}, v{S0+i}')
    for i in range(NK):
        A(f'v_and_b32 v{S0+i}, 0xffff0000, v{S0+i}')
    for i in range(NK):
        A(f'v_mul_f32 v{S0+i}, s16, v{S0+i}')
    for i in range(NK):
        A(f'v_cvt_pk_bf16_f32 v{S0+i}, v{S0+i}, v{S0+i}')
    for i in range(NK):
        A(f'v_and_b32 v{S0+i}, 0xffff0000, v{S0+i}')
    M = 116; L = 117
    A(f'v_max3_f32 v{M}, v{S0}, v{S0+1}, v{S0+2}')
    for i in range(3, NK-1, 2):
        A(f'v_max3_f32 v{M}, v{M}, v{S0+i}, v{S0+i+1}')
    A(f'v_max_f32 v{M}, v{M}, v{S0+NK-1}')
    allreduce_xrow(A, [M], [118], op='max')
    A(f's_mov_b32 s16, {LOG2E:#x}')
    for i in range(NK):
        A(f'v_sub_f32 v{S0+i}, v{S0+i}, v{M}')
    for i in range(NK):
        A(f'v_mul_f32 v{S0+i}, s16, v{S0+i}')
    for i in range(NK):
        A(f'v_exp_f32 v{S0+i}, v{S0+i}')
    A(f'v_add_f32 v{L}, v{S0}, v{S0+1}')
    for i in range(2, NK):
        A(f'v_add_f32 v{L}, v{L}, v{S0+i}')
    allreduce_xrow(A, [L], [118])
    A('s_lshl_b32 s16, s3, 3')
    A(f's_add_u32 s16, s16, {L_MISC}')
    A('v_mov_b32 v118, s16')
    A(f'ds_write_b64 v118, v[{M}:{L}]')
    for k in range(8): A(f'v_mov_b32 v{OACC+k}, 0')
    for i in range(NK):
        j = NK + i
        A.vm_wait(ring_tagname(j))
        unpack8(A, slot(j), 120)
        issue_more(1)
        for k in range(8):
            A(f'v_fmac_f32 v{OACC+k}, v{S0+i}, v{120+k}')
        if i == 7:
            A('s_waitcnt lgkmcnt(0)')
            A('s_barrier')
            A(f'v_mov_b32 v118, {L_MISC}')
            for k in range(8):
                A(f'ds_read_b128 v[120:123], v118 offset:{16*k}')
                A('s_waitcnt lgkmcnt(0)')
                if k == 0:
                    A('v_max_f32 v112, v120, v122')
                else:
                    A('v_max3_f32 v112, v112, v120, v122')
            A(f's_mov_b32 s16, {LOG2E:#x}')
            A('v_mov_b32 v113, 0')
            for k in range(8):
                A(f'ds_read_b128 v[120:123], v118 offset:{16*k}')
                A('s_waitcnt lgkmcnt(0)')
                A('v_sub_f32 v124, v120, v112')
                A('v_sub_f32 v125, v122, v112')
                A('v_mul_f32 v124, s16, v124')
                A('v_mul_f32 v125, s16, v125')
                A('v_exp_f32 v124, v124')
                A('v_exp_f32 v125, v125')
                A('v_fmac_f32 v113, v121, v124')
                A('v_fmac_f32 v113, v123, v125')
            A('s_cmp_eq_u32 s3, 0')
            A(f's_cbranch_scc0 L_nopub_{tag}')
            A('s_lshl_b32 s16, s2, 3')
            A(f's_add_u32 s16, s16, {WS_EXCH}')
            A('v_mov_b32 v118, 0')
            A('s_mov_b64 exec, 1')
            A(f'buffer_store_dwordx2 v[112:113], v118, {srd("ws")}, s16 offen sc1')
            A('s_mov_b64 exec, -1')
            A.label(f'L_nopub_{tag}')
            A('s_nop 1')

        if i == 20:
            A('s_xor_b32 s16, s2, 8')
            A('s_lshl_b32 s16, s16, 3')
            A(f's_add_u32 s16, s16, {WS_EXCH}')
            A('v_mov_b32 v118, 0')
            A.vm_issue(f'buffer_load_dwordx2 v[114:115], v118, {srd("ws")}, s16 offen sc1', 'pg')
    if g.stop == 2:
        A.vm_wait_all()
        dump_regs(A, list(range(8, 16)) + [116, 117, 112, 113], 0)
        A('s_branch L_END')
        return
    epilogue(g, service)

def epilogue(g, service):
    A = g.A
    tag = 's' if service else 'n'
    allreduce_xrow(A, list(range(8, 16)), list(range(120, 128)))
    A.vm_wait('pg')
    A('v_cmp_eq_u32 vcc, 0, v115')
    A('s_nop 3')
    A('s_cmp_eq_u64 vcc, 0')
    A(f's_cbranch_scc1 L_pg_ok_{tag}')
    A('s_mov_b32 s20, 0')
    A.label(f'L_pg_poll_{tag}')
    A('s_sleep 2')
    A('s_xor_b32 s16, s2, 8')
    A('s_lshl_b32 s16, s16, 3')
    A(f's_add_u32 s16, s16, {WS_EXCH}')
    A('v_mov_b32 v118, 0')
    A(f'buffer_load_dwordx2 v[114:115], v118, {srd("ws")}, s16 offen sc1')
    A('s_waitcnt vmcnt(0)')
    A('v_cmp_eq_u32 vcc, 0, v115')
    A('s_nop 3')
    A('s_cmp_eq_u64 vcc, 0')
    A(f's_cbranch_scc1 L_pg_ok_{tag}')
    A('s_add_u32 s20, s20, 1')
    A('s_cmp_lt_u32 s20, 100000')
    A(f's_cbranch_scc1 L_pg_poll_{tag}')
    A.label(f'L_pg_ok_{tag}')
    A('s_nop 1')
    A(f's_mov_b32 s16, {LOG2E:#x}')
    A('v_max_f32 v118, v112, v114')
    A('v_sub_f32 v120, v112, v118')
    A('v_sub_f32 v121, v114, v118')
    A('v_sub_f32 v122, v116, v118')
    A('v_mul_f32 v120, s16, v120')
    A('v_mul_f32 v121, s16, v121')
    A('v_mul_f32 v122, s16, v122')
    A('v_exp_f32 v120, v120')
    A('v_exp_f32 v121, v121')
    A('v_exp_f32 v122, v122')
    A('v_mul_f32 v120, v113, v120')
    A('v_fmac_f32 v120, v115, v121')
    fdiv(A, 123, 122, 120, 124, 125)
    for k in range(8): A(f'v_mul_f32 v{8+k}, v{8+k}, v123')
    A('s_lshl_b32 s16, s3, 9')
    A(f's_add_u32 s16, s16, {L_RED}')
    A('v_and_b32 v118, 15, v1')
    A('v_lshlrev_b32 v118, 5, v118')
    A('v_add_u32 v118, s16, v118')
    A('ds_write_b128 v118, v[8:11]')
    A('ds_write_b128 v118, v[12:15] offset:16')
    A('s_waitcnt lgkmcnt(0)')
    A('s_barrier')
    A('s_lshl_b32 s16, s3, 5')
    A(f's_add_u32 s16, s16, {L_RED}')
    A('v_mov_b32 v118, s16')
    A('ds_read_b128 v[8:11], v118')
    A('ds_read_b128 v[12:15], v118 offset:16')
    for w in range(1, 16):
        base = 16 + 8*((w-1) % 4)
        A(f'ds_read_b128 v[{base}:{base+3}], v118 offset:{w*512}')
        A(f'ds_read_b128 v[{base+4}:{base+7}], v118 offset:{w*512+16}')
        if w % 4 == 0 or w == 15:
            A('s_waitcnt lgkmcnt(0)')
            lo = w-3 if w % 4 == 0 else 13
            for ww in range(lo, w+1):
                bb = 16 + 8*((ww-1) % 4)
                for k in range(8): A(f'v_add_f32 v{8+k}, v{8+k}, v{bb+k}')
    for k in range(8): A(f'v_mov_b32 v{16+k}, 0')
    D = g.D
    for i in range(8):
        j = 2*NK + i
        A.vm_wait(ring_tagname(j))
        unpack8(A, 48 + 4*(j % D), 120)
        for k in range(8): A(f'v_fmac_f32 v{16+k}, v{8+i}, v{120+k}')
    A('s_lshl_b32 s16, s3, 11')
    A(f's_add_u32 s16, s16, {L_RED2}')
    A('v_lshlrev_b32 v118, 5, v1')
    A('v_add_u32 v118, s16, v118')
    A('ds_write_b128 v118, v[16:19]')
    A('ds_write_b128 v118, v[20:23] offset:16')
    A('s_waitcnt lgkmcnt(0)')
    A('s_barrier')
    A('s_cmp_lt_u32 s3, 8')
    A(f's_cbranch_scc0 L_noatt_{tag}')
    A('v_lshlrev_b32 v118, 2, v0')
    A(f'v_add_u32 v119, {L_RED2}, v118')
    A('ds_read_b32 v8, v119')
    for w in range(1, 16):
        A(f'ds_read_b32 v{8+w}, v119 offset:{w*2048}')
    A('s_waitcnt lgkmcnt(0)')
    for w in range(1, 16): A(f'v_add_f32 v8, v8, v{8+w}')
    A(f's_lshl_b32 s16, s{S_B}, 11')
    A(f's_add_u32 s16, s16, {WS_ATT}')
    A(f'buffer_atomic_add_f32 v8, v118, {srd("ws")}, s16 offen')
    A('s_waitcnt vmcnt(0)')
    A.label(f'L_noatt_{tag}')
    A('s_nop 1')
    A('s_barrier')
    A('s_cmp_eq_u32 s3, 0')
    A(f's_cbranch_scc0 L_nosig_{tag}')
    A('s_and_b32 s16, s2, 7')
    A('s_lshl_b32 s16, s16, 7')
    A(f's_add_u32 s16, s16, {WS_CNT}')
    A('v_mov_b32 v8, 1')
    A('v_mov_b32 v9, 0')
    A('s_mov_b64 exec, 1')
    A(f'buffer_atomic_add v8, v9, {srd("ws")}, s16 offen')
    A('s_mov_b64 exec, -1')
    A.label(f'L_nosig_{tag}')
    A('s_nop 1')
    A.inflight = []
    A('s_branch L_WORK')
```

```python
from gen import *
from phases import unpack8, poll, layernorm, dump_regs

def run(g):
    A = g.A
    A.label('L_WORK')
    A.inflight = []
    A(f's_sub_u32 s18, s2, {WORK0}')
    A(f's_cmp_lt_u32 s18, {NWORK}')
    A('s_cbranch_scc0 L_END')
    A('s_cmp_eq_u32 s3, 0')
    A('s_cbranch_scc0 L_w_nopoll')
    A('v_and_b32 v125, 7, v1')
    A('v_lshlrev_b32 v125, 7, v125')
    A(f'v_add_u32 v125, {WS_CNT}, v125')
    poll(A, 'f2', 'ws', 125, 32)
    A.label('L_w_nopoll')
    A('s_barrier')
    A('s_cmp_lt_u32 s3, 4')
    A('s_cbranch_scc0 L_w_noln')
    A('v_lshlrev_b32 v3, 5, v1')
    A('s_lshl_b32 s16, s3, 11')
    A(f's_add_u32 s16, s16, {WS_ATT}')
    A(f'buffer_load_dwordx4 v[8:11], v3, {srd("ws")}, s16 offen sc1')
    A(f'buffer_load_dwordx4 v[12:15], v3, {srd("ws")}, s16 offen offset:16 sc1')
    A('s_mul_i32 s16, s3, 6144')
    A(f'buffer_load_dwordx4 v[16:19], v2, {srd("ws")}, s16 offen offset:2048 sc1')
    A(f'buffer_load_dwordx4 v[20:23], v2, {srd("ws")}, s16 offen offset:3072 sc1')
    A('s_add_u32 s16, s16, 4096')
    A(f'buffer_load_dwordx4 v[24:27], v2, {srd("ws")}, s16 offen sc1')
    A('s_lshl_b32 s16, s3, 10')
    A(f'buffer_load_dwordx4 v[28:31], v2, {srd("x")}, s16 offen')
    A('s_waitcnt vmcnt(0)')
    unpack8(A, 16, 32)
    unpack8(A, 20, 40)
    unpack8(A, 24, 48)
    unpack8(A, 28, 56)
    for k in range(8): bf16r(A, 8+k)
    for k in range(8): A(f'v_mul_f32 v{8+k}, v{8+k}, v{32+k}')
    for k in range(8): bf16r(A, 8+k)
    for k in range(8): A(f'v_add_f32 v{8+k}, v{8+k}, v{56+k}')
    for k in range(8): bf16r(A, 8+k)
    A('s_lshl_b32 s16, s3, 11')
    A(f's_add_u32 s16, s16, {L_RED}')
    A('v_add_u32 v64, s16, v3')
    A('ds_write_b128 v64, v[8:11]')
    A('ds_write_b128 v64, v[12:15] offset:16')
    layernorm(A, 8, 64)
    for k in range(8): A(f'v_add_f32 v{48+k}, 1.0, v{48+k}')
    for k in range(8): bf16r(A, 48+k)
    for k in range(8): A(f'v_mul_f32 v{8+k}, v{8+k}, v{48+k}')
    for k in range(8): bf16r(A, 8+k)
    for k in range(8): A(f'v_add_f32 v{8+k}, v{8+k}, v{40+k}')
    for k in range(8): bf16r(A, 8+k)
    A('s_lshl_b32 s16, s3, 2')
    A(f's_add_u32 s16, s16, {L_ACT}')
    A('v_lshlrev_b32 v64, 7, v1')
    A('v_add_u32 v64, s16, v64')
    for k in range(8): A(f'ds_write_b32 v64, v{8+k} offset:{16*k}')
    A('s_waitcnt lgkmcnt(0)')
    A.label('L_w_noln')
    A('s_barrier')
    A('v_and_b32 v3, 31, v0')
    A('v_lshrrev_b32 v4, 5, v0')
    A('v_and_b32 v5, 15, v3')
    A('v_lshlrev_b32 v5, 2, v5')
    A('v_lshl_add_u32 v5, v4, 10, v5')
    A('v_lshrrev_b32 v6, 4, v3')
    A('v_lshlrev_b32 v6, 15, v6')
    A('v_add_u32 v5, v5, v6')
    A('v_lshlrev_b32 v6, 8, v4')
    A(f'v_add_u32 v6, {L_ACT}, v6')
    for k in range(8): A(f'v_mov_b32 v{8+k}, 0')
    for r0 in range(0, 16, 4):
        for r in range(r0, r0+4):
            u = r - r0
            A(f'ds_read_b32 v{16+u}, v5 offset:{r*64}')
            A(f'ds_read_b128 v[{24+4*u}:{27+4*u}], v6 offset:{r*16}')
        A('s_waitcnt lgkmcnt(0)')
        for r in range(r0, r0+4):
            u = r - r0
            A(f'v_lshlrev_b32 v20, 16, v{16+u}')
            A(f'v_and_b32 v21, 0xffff0000, v{16+u}')
            for b in range(4):
                A(f'v_fmac_f32 v{8+2*b}, v{24+4*u+b}, v20')
                A(f'v_fmac_f32 v{9+2*b}, v{24+4*u+b}, v21')
    for k in range(8): A(f'v_mov_b32 v{40+k}, v{8+k}')
    for k in range(8): A(f'v_permlane32_swap_b32 v{8+k}, v{40+k}')
    for k in range(8): A(f'v_add_f32 v{8+k}, v{8+k}, v{40+k}')
    A('s_lshl_b32 s16, s3, 10')
    A(f's_add_u32 s16, s16, {L_RED2}')
    A('v_lshlrev_b32 v5, 5, v3')
    A('v_add_u32 v5, s16, v5')
    A('ds_write_b128 v5, v[8:11]')
    A('ds_write_b128 v5, v[12:15] offset:16')
    A('s_waitcnt lgkmcnt(0)')
    A('s_barrier')
    A('s_cmp_eq_u32 s3, 0')
    A('s_cbranch_scc0 L_w_noact')
    A('v_and_b32 v3, 15, v1')
    A('v_lshrrev_b32 v4, 4, v1')
    A('v_lshlrev_b32 v5, 5, v3')
    A('v_lshl_add_u32 v5, v4, 3, v5')
    A(f'v_add_u32 v5, {L_RED2}, v5')
    A('ds_read_b64 v[8:9], v5')
    A('ds_read_b64 v[10:11], v5 offset:512')
    for w in range(1, 16):
        u = (w-1) % 4
        A(f'ds_read_b64 v[{16+4*u}:{17+4*u}], v5 offset:{w*1024}')
        A(f'ds_read_b64 v[{18+4*u}:{19+4*u}], v5 offset:{w*1024+512}')
        if w % 4 == 0 or w == 15:
            A('s_waitcnt lgkmcnt(0)')
            lo = w-3 if w % 4 == 0 else 13
            for ww in range(lo, w+1):
                uu = (ww-1) % 4
                for k in range(4): A(f'v_add_f32 v{8+k}, v{8+k}, v{16+4*uu+k}')
    for k in range(4): bf16r(A, 8+k)
    A('s_mov_b32 s16, 0x3d372713')
    A('s_mov_b32 s17, 0xc0135761')
    for k in range(2):
        A(f'v_mul_f32 v{16+k}, v{8+k}, v{8+k}')
        A(f'v_mul_f32 v{16+k}, s16, v{16+k}')
        A(f'v_fma_f32 v{16+k}, v{16+k}, v{8+k}, v{8+k}')
        A(f'v_mul_f32 v{16+k}, s17, v{16+k}')
        A(f'v_min_f32 v{16+k}, 0x42fc0000, v{16+k}')
        A(f'v_exp_f32 v{16+k}, v{16+k}')
        A(f'v_add_f32 v{16+k}, 1.0, v{16+k}')
        A(f'v_rcp_f32 v{18+k}, v{16+k}')
        A(f'v_fma_f32 v{20+k}, -v{16+k}, v{18+k}, 1.0')
        A(f'v_fma_f32 v{18+k}, v{20+k}, v{18+k}, v{18+k}')
        A(f'v_mul_f32 v{8+k}, v{8+k}, v{18+k}')
        bf16r(A, 8+k)
        A(f'v_mul_f32 v{8+k}, v{8+k}, v{10+k}')
        bf16r(A, 8+k)
    A('v_lshlrev_b32 v5, 5, v3')
    A('v_lshl_add_u32 v5, v4, 2, v5')
    A(f'v_add_u32 v5, {L_MISC}, v5')
    A('ds_write_b32 v5, v8')
    A('ds_write_b32 v5, v9 offset:16')
    A('s_waitcnt lgkmcnt(0)')
    A.label('L_w_noact')
    A('s_barrier')
    A('v_and_b32 v3, 255, v0')
    A('v_lshrrev_b32 v4, 8, v0')
    A('v_lshlrev_b32 v5, 2, v3')
    A(f'v_add_u32 v5, {L_DOWN}, v5')
    A('v_lshlrev_b32 v6, 2, v4')
    A(f'v_add_u32 v6, {L_MISC}, v6')
    A('v_mov_b32 v8, 0')
    A('v_mov_b32 v9, 0')
    for j0 in range(0, 32, 8):
        for j in range(j0, j0+8):
            u = j - j0
            A(f'ds_read_b32 v{16+u}, v5 offset:{j*1024}')
            A(f'ds_read_b32 v{24+u}, v6 offset:{j*16}')
        A('s_waitcnt lgkmcnt(0)')
        for j in range(j0, j0+8):
            u = j - j0
            A(f'v_lshlrev_b32 v10, 16, v{16+u}')
            A(f'v_and_b32 v11, 0xffff0000, v{16+u}')
            A(f'v_fmac_f32 v8, v{24+u}, v10')
            A(f'v_fmac_f32 v9, v{24+u}, v11')
    A('v_lshlrev_b32 v5, 3, v0')
    A(f's_mov_b32 s16, {WS_DN}')
    A(f'buffer_atomic_add_f32 v8, v5, {srd("ws")}, s16 offen')
    A(f'buffer_atomic_add_f32 v9, v5, {srd("ws")}, s16 offen offset:4')
    A('s_waitcnt vmcnt(0)')
    A('s_barrier')
    A('s_cmp_eq_u32 s3, 0')
    A('s_cbranch_scc0 L_w_notick')
    A('v_mov_b32 v8, 1')
    A('v_mov_b32 v9, 0')
    A(f's_mov_b32 s16, {WS_CNT+0x400}')
    A('s_mov_b64 exec, 1')
    A(f'buffer_atomic_add v8, v9, {srd("ws")}, s16 offen sc0')
    A('s_waitcnt vmcnt(0)')
    A(f'v_mov_b32 v9, {L_MISC+0x200}')
    A('ds_write_b32 v9, v8')
    A('s_waitcnt lgkmcnt(0)')
    A('s_mov_b64 exec, -1')
    A.label('L_w_notick')
    A('s_barrier')
    A(f'v_mov_b32 v9, {L_MISC+0x200}')
    A('ds_read_b32 v8, v9')
    A('s_waitcnt lgkmcnt(0)')
    A('v_readfirstlane_b32 s16, v8')
    A('s_nop 3')
    A(f's_cmp_eq_u32 s16, {NWORK-1}')
    A('s_cbranch_scc0 L_END')
    A('v_lshlrev_b32 v5, 3, v0')
    A(f's_mov_b32 s16, {WS_DN}')
    A(f'buffer_load_dwordx2 v[8:9], v5, {srd("ws")}, s16 offen sc1')
    A('v_mul_u32_u24 v6, 6144, v4')
    A('v_lshl_add_u32 v6, v3, 2, v6')
    A('s_mov_b32 s16, 5120')
    A(f'buffer_load_dword v10, v6, {srd("ws")}, s16 offen sc1')
    A(f'v_add_u32 v7, {L_RED}, v5')
    A('ds_read_b64 v[12:13], v7')
    A('s_waitcnt vmcnt(0) lgkmcnt(0)')
    A('v_lshlrev_b32 v14, 16, v10')
    A('v_and_b32 v15, 0xffff0000, v10')
    bf16r(A, 8); bf16r(A, 9)
    A('v_mul_f32 v8, v8, v14')
    A('v_mul_f32 v9, v9, v15')
    bf16r(A, 8); bf16r(A, 9)
    A('v_add_f32 v8, v8, v12')
    A('v_add_f32 v9, v9, v13')
    A('v_cvt_pk_bf16_f32 v8, v8, v9')
    A('v_lshlrev_b32 v5, 2, v0')
    A(f'buffer_store_dword v8, v5, {srd("out")}, 0 offen')
```

```python
import sys, argparse
sys.path.insert(0, 'work')
from asmlib import Asm

KN = 'adaLN_cond__mha_block_cached__geglu_ffn__decode_kernel'
WS_MOD  = 0x0000
WS_EXCH = 0x8000
WS_CNT  = 0x9000
WS_ATT  = 0xA000
WS_DN   = 0xC000
WS_ZEND = 0xE000
WS_DBG  = 0x100000
WS_SIZE = 0x1000000
L_GATE = 0x00000; L_UP = 0x08000; L_DOWN = 0x10000
L_RED  = 0x18000
L_RED2 = 0x1A000
L_ACT  = 0x22000
L_MISC = 0x24000
LDS_BYTES = 0x24400
NPROD = 96
WORK0 = 96; NWORK = 56
LOG2E = 0x3fb8aa3b
SCALE = 0x3db504f3

S_G, S_W = 2, 3
SRD = dict(x=44, K=48, V=52, wq=56, wo=60, gate=64, up=68, down=72, c=76, wmod=80, out=84, dbg=88, ws=92)
SIZES = dict(x=4096, K=1<<27, V=1<<27, wq=4<<20, wo=4<<20, gate=512*1792*2, up=512*1792*2, down=1792*512*2, c=4096, wmod=512*3072*2, out=4096, dbg=256, ws=WS_SIZE)
def srd(n): b = SRD[n]; return f's[{b}:{b+3}]'
S_B, S_H, S_HALF, S_KV = 96, 97, 98, 99

def bf16r(A, v, t=None):
    A(f'v_cvt_pk_bf16_f32 v{v}, v{v}, v{v}')
    A(f'v_and_b32 v{v}, 0xffff0000, v{v}')

def allreduce_row(A, regs, op='add'):
    for sh in (8, 4, 2, 1):
        for r in regs:
            A(f'v_{op}_f32_dpp v{r}, v{r}, v{r} row_ror:{sh} row_mask:0xf bank_mask:0xf')

def allreduce_xrow(A, regs, tmps, op='add'):
    for sw in ('v_permlane16_swap_b32', 'v_permlane32_swap_b32'):
        for r, t in zip(regs, tmps): A(f'v_mov_b32 v{t}, v{r}')
        for r, t in zip(regs, tmps): A(f'{sw} v{r}, v{t}')
        for r, t in zip(regs, tmps): A(f'v_{op}_f32 v{r}, v{r}, v{t}')

def fdiv(A, q, x, d, r, e):
    A(f'v_rcp_f32 v{r}, v{d}')
    A(f'v_fma_f32 v{e}, -v{d}, v{r}, 1.0')
    A(f'v_fma_f32 v{r}, v{e}, v{r}, v{r}')
    A(f'v_mul_f32 v{q}, v{x}, v{r}')
    A(f'v_fma_f32 v{e}, -v{q}, v{d}, v{x}')
    A(f'v_fma_f32 v{q}, v{e}, v{r}, v{q}')

class G:
    def __init__(self, stop=99, depth=16):
        self.A = Asm(); self.stop = stop; self.D = depth
    def header(self):
        A = self.A
        A.raw(f'; @launch grid=(256,1,1) block=(1024,1,1) lds={LDS_BYTES}')
        A.raw('.amdgcn_target "amdgcn-amd-amdhsa--gfx950"')
        A.raw('.text')
        A.raw(f'.globl {KN}\n.p2align 8\n.type {KN},@function\n{KN}:')
    def footer(self):
        A = self.A
        A.label('L_END')
        A('s_endpgm')
        A.raw('.section .rodata,"a"\n.p2align 6')
        A.raw(f'.amdhsa_kernel {KN}')
        A.raw('  .amdhsa_next_free_vgpr 128\n  .amdhsa_next_free_sgpr 102\n  .amdhsa_accum_offset 128')
        A.raw('  .amdhsa_group_segment_fixed_size 0\n  .amdhsa_kernarg_size 112\n  .amdhsa_user_sgpr_count 2\n  .amdhsa_user_sgpr_kernarg_segment_ptr 1\n  .amdhsa_system_sgpr_workgroup_id_x 1')
        A.raw('.end_amdhsa_kernel')
    def setup(self):
        A = self.A
        A('s_cmp_ge_u32 s2, 256')
        A('s_cbranch_scc1 L_END')
        A('s_load_dwordx16 s[16:31], s[0:1], 0')
        A('s_load_dwordx8 s[32:39], s[0:1], 64')
        A('s_load_dwordx4 s[40:43], s[0:1], 96')
        A('v_lshrrev_b32 v1, 6, v0')
        A('v_readfirstlane_b32 s3, v1')
        A('v_and_b32 v1, 63, v0')
        A('v_lshlrev_b32 v2, 4, v1')
        A(f's_and_b32 s{S_H}, s2, 7')
        A('s_lshr_b32 s4, s2, 3')
        A(f's_and_b32 s{S_HALF}, s4, 1')
        A('s_lshr_b32 s5, s4, 1')
        A(f's_and_b32 s{S_B}, s5, 3')
        A('s_lshr_b32 s5, s4, 3')
        A('s_lshl_b32 s5, s5, 3')
        A(f's_or_b32 s{S_H}, s{S_H}, s5')
        A('s_waitcnt lgkmcnt(0)')
        order = ['x','K','V','wq','wo',None,'gate','up','down','c','wmod','out','dbg','ws']
        for i, n in enumerate(order):
            if n is None: continue
            b = SRD[n]; p = 16 + 2*i
            A(f's_mov_b32 s{b}, s{p}')
            A(f's_and_b32 s{b+1}, s{p+1}, 0xffff')
            A(f's_mov_b32 s{b+2}, {SIZES[n]:#x}')
            A(f's_mov_b32 s{b+3}, 0x00020000')
        A(f's_lshl_b32 s4, s{S_B}, 5')
        A(f's_add_u32 s4, s4, s{S_H}')
        A('s_lshl_b32 s4, s4, 20')
        A(f's_lshl_b32 s5, s{S_HALF}, 19')
        A('s_add_u32 s4, s4, s5')
        A('s_lshl_b32 s5, s3, 15')
        A(f's_add_u32 s{S_KV}, s4, s5')

def build(stop=99, depth=16):
    g = G(stop, depth)
    g.header(); g.setup()
    import phases
    phases.body(g)
    g.footer()
    return g.A.text()

if __name__ == '__main__':
    ap = argparse.ArgumentParser()
    ap.add_argument('--stop', type=int, default=99)
    ap.add_argument('--depth', type=int, default=16)
    ap.add_argument('-o', default='k.s')
    a = ap.parse_args()
    open(a.o, 'w').write(build(a.stop, a.depth))
    print('wrote', a.o)
```

```python
from gen import *

def unpack8(A, d, t):
    for k in range(4):
        A(f'v_lshlrev_b32 v{t+2*k}, 16, v{d+k}')
        A(f'v_and_b32 v{t+2*k+1}, 0xffff0000, v{d+k}')

def poll(A, name, srdn, voff, target, limit=200000, sleep=1):
    A('s_mov_b32 s20, 0')
    A.label(f'L_{name}')
    A('s_nop 1')
    A(f'buffer_load_dword v126, v{voff}, {srd(srdn)}, 0 offen sc1')
    A('s_waitcnt vmcnt(0)')
    A(f'v_cmp_eq_u32 vcc, {target}, v126')
    A('s_nop 3')
    A('s_cmp_eq_u64 vcc, -1')
    A(f's_cbranch_scc1 L_{name}_ok')
    A('s_add_u32 s20, s20, 1')
    A(f's_cmp_ge_u32 s20, {limit}')
    A(f's_cbranch_scc1 L_{name}_ok')
    if sleep: A(f's_sleep {sleep}')
    A(f's_branch L_{name}')
    A.label(f'L_{name}_ok')
    A('s_nop 1')

def silu(A, x, t0, t1, t2):
    A(f'v_mul_f32 v{t0}, 0xbfb8aa3b, v{x}')
    A(f'v_min_f32 v{t0}, 0x42fc0000, v{t0}')
    A(f'v_exp_f32 v{t0}, v{t0}')
    A(f'v_add_f32 v{t0}, 1.0, v{t0}')
    A(f'v_rcp_f32 v{t1}, v{t0}')
    A(f'v_fma_f32 v{t2}, -v{t0}, v{t1}, 1.0')
    A(f'v_fma_f32 v{t1}, v{t2}, v{t1}, v{t1}')
    A(f'v_mul_f32 v{x}, v{x}, v{t1}')
    bf16r(A, x)

def layernorm(A, x, t):
    s = t; m = t+1; d0 = t+2
    A(f'v_add_f32 v{s}, v{x}, v{x+1}')
    for k in range(2, 8): A(f'v_add_f32 v{s}, v{s}, v{x+k}')
    allreduce_row(A, [s]); allreduce_xrow(A, [s], [t+10])
    A(f'v_mul_f32 v{m}, 0x3b000000, v{s}')
    for k in range(8): A(f'v_sub_f32 v{d0+k}, v{x+k}, v{m}')
    A(f'v_mul_f32 v{s}, v{d0}, v{d0}')
    for k in range(1, 8): A(f'v_fmac_f32 v{s}, v{d0+k}, v{d0+k}')
    allreduce_row(A, [s]); allreduce_xrow(A, [s], [t+10])
    A(f'v_mul_f32 v{s}, 0x3b000000, v{s}')
    bf16r(A, s)
    A(f'v_add_f32 v{s}, 0x3727c5ac, v{s}')
    bf16r(A, s)
    A(f'v_sqrt_f32 v{s}, v{s}')
    bf16r(A, s)
    bf16r(A, m)
    for k in range(8): A(f'v_sub_f32 v{d0+k}, v{x+k}, v{m}')
    for k in range(8): bf16r(A, d0+k)
    for k in range(8):
        fdiv(A, x+k, d0+k, s, t+10, t+11)
    for k in range(8): bf16r(A, x+k)

def pre_kernel(g):
    A = g.A
    A.raw(f'.globl {PRE}\n.p2align 8\n.type {PRE},@function\n{PRE}:')
    A.hist = []; A.inflight = []
    A(f's_cmp_ge_u32 s2, {NPROD}')
    A('s_cbranch_scc1 L_PRE_END')
    A('s_load_dwordx4 s[16:19], s[0:1], 72')
    A('s_load_dwordx2 s[20:21], s[0:1], 104')
    A('v_lshrrev_b32 v1, 6, v0')
    A('v_readfirstlane_b32 s3, v1')
    A('v_and_b32 v1, 63, v0')
    A('v_lshlrev_b32 v2, 4, v1')
    A('v_lshrrev_b32 v3, 4, v1')
    A('s_waitcnt lgkmcnt(0)')
    for n, p in (('c', 16), ('wmod', 18), ('ws', 20)):
        b = SRD[n]
        A(f's_mov_b32 s{b}, s{p}')
        A(f's_and_b32 s{b+1}, s{p+1}, 0xffff')
        A(f's_mov_b32 s{b+2}, {SIZES[n]:#x}')
        A(f's_mov_b32 s{b+3}, 0x00020000')
    A('v_lshlrev_b32 v120, 2, v0')
    A.vm_issue(f'buffer_load_dword v121, v120, {srd("c")}, 0 offen', 'c')
    A('v_mul_u32_u24 v120, 6144, v3')
    A('v_and_b32 v4, 15, v1')
    A('v_lshl_add_u32 v120, v4, 2, v120')
    A(f's_mul_i32 s16, s3, {32*6144}')
    A('s_lshl_b32 s17, s2, 6')
    A('s_add_u32 s16, s16, s17')
    for i in range(8):
        A(f's_add_u32 s17, s16, {i*4*6144}')
        A.vm_issue(f'buffer_load_dword v{112+i}, v120, {srd("wmod")}, s17 offen', f'wm{i}')
    A.vm_wait('c')
    A('v_lshlrev_b32 v122, 16, v121')
    A('v_and_b32 v123, 0xffff0000, v121')
    silu(A, 122, 124, 125, 126)
    silu(A, 123, 124, 125, 126)
    A('v_and_b32 v124, 255, v0')
    A('v_lshlrev_b32 v124, 5, v124')
    A('v_lshrrev_b32 v125, 8, v0')
    A('v_lshl_add_u32 v124, v125, 2, v124')
    A('ds_write_b32 v124, v122')
    A('ds_write_b32 v124, v123 offset:16')
    A('s_waitcnt lgkmcnt(0)')
    A('s_barrier')
    for k in range(8): A(f'v_mov_b32 v{4+k}, 0')
    A('s_lshl_b32 s16, s3, 9')
    A('v_lshlrev_b32 v124, 4, v3')
    A('v_add_u32 v124, s16, v124')
    for i in range(8):
        A(f'ds_read_b128 v[12:15], v124 offset:{i*64}')
        A.vm_wait(f'wm{i}')
        A(f'v_lshlrev_b32 v122, 16, v{112+i}')
        A(f'v_and_b32 v123, 0xffff0000, v{112+i}')
        A('s_waitcnt lgkmcnt(0)')
        for b in range(4):
            A(f'v_fmac_f32 v{4+2*b}, v{12+b}, v122')
            A(f'v_fmac_f32 v{5+2*b}, v{12+b}, v123')
    allreduce_xrow(A, list(range(4, 12)), list(range(120, 128)))
    A('v_and_b32 v124, 15, v1')
    A('v_lshlrev_b32 v124, 3, v124')
    A('s_lshl_b32 s16, s3, 9')
    A('s_add_u32 s16, s16, 8192')
    A('v_add_u32 v124, s16, v124')
    for b in range(4):
        A(f'ds_write_b64 v124, v[{4+2*b}:{5+2*b}] offset:{b*128}')
    A('s_waitcnt lgkmcnt(0)')
    A('s_barrier')
    A('s_cmp_eq_u32 s3, 0')
    A('s_cbranch_scc0 L_PRE_END')
    A('v_lshlrev_b32 v124, 7, v3')
    A('v_and_b32 v125, 15, v1')
    A('v_lshl_add_u32 v124, v125, 3, v124')
    A('v_add_u32 v124, 8192, v124')
    A('ds_read_b64 v[4:5], v124')
    for w in range(1, 16):
        A(f'ds_read_b64 v[{8+2*(w%4)}:{9+2*(w%4)}], v124 offset:{w*512}')
        if w % 4 == 0 or w == 15:
            A('s_waitcnt lgkmcnt(0)')
            lo = (w-3 if w % 4 == 0 else 13)
            for ww in range(lo, w+1):
                A(f'v_add_f32 v4, v4, v{8+2*(ww%4)}')
                A(f'v_add_f32 v5, v5, v{9+2*(ww%4)}')
    A('v_cvt_pk_bf16_f32 v4, v4, v5')
    A('v_mul_u32_u24 v124, 6144, v3')
    A('v_lshl_add_u32 v124, v125, 2, v124')
    A('s_lshl_b32 s16, s2, 6')
    A(f'buffer_store_dword v4, v124, {srd("ws")}, s16 offen')
    A('v_mov_b32 v8, 0\nv_mov_b32 v9, 0\nv_mov_b32 v10, 0\nv_mov_b32 v11, 0')
    A('s_lshl_b32 s16, s2, 9')
    A(f's_add_u32 s16, s16, {WS_EXCH}')
    A('s_mov_b64 exec, 0xffffffff')
    A(f'buffer_store_dwordx4 v[8:11], v2, {srd("ws")}, s16 offen')
    A('s_mov_b64 exec, -1')
    A.label('L_PRE_END')
    A('s_endpgm')

def ring_tagname(j): return f'r{j}'
NK = 32
def ring_seq(j):
    if j < NK: return ('K', j)
    if j < 2*NK: return ('V', j-NK)
    return ('W', j-2*NK)
NSTREAM = 2*NK + 8

def ring_issue(g, j):
    A = g.A; D = g.D
    kind, i = ring_seq(j)
    r = 48 + 4*(j % D)
    if kind in 'KV':
        A(f's_add_u32 s17, s{S_KV}, {i*1024}')
        A.vm_issue(f'buffer_load_dwordx4 v[{r}:{r+3}], v2, {srd(kind)}, s17 offen nt', ring_tagname(j))
    else:
        A(f's_lshl_b32 s17, s{S_H}, 17')
        A('s_lshl_b32 s18, s3, 13')
        A('s_add_u32 s17, s17, s18')
        A(f's_add_u32 s17, s17, {i*1024}')
        A.vm_issue(f'buffer_load_dwordx4 v[{r}:{r+3}], v2, {srd("wo")}, s17 offen', ring_tagname(j))

def prologue(g):
    A = g.A; D = g.D
    A('v_lshrrev_b32 v3, 4, v1')
    A(f's_lshl_b32 s16, s{S_B}, 10')
    A.vm_issue(f'buffer_load_dwordx4 v[112:115], v2, {srd("x")}, s16 offen', 'x')
    A(f's_mul_i32 s16, s{S_B}, 6144')
    A.vm_issue(f'buffer_load_dwordx4 v[116:119], v2, {srd("ws")}, s16 offen', 'sa')
    A.vm_issue(f'buffer_load_dwordx4 v[120:123], v2, {srd("ws")}, s16 offen offset:1024', 'ca')
    A('v_and_b32 v4, 15, v1')
    A('v_lshlrev_b32 v124, 13, v3')
    A('v_lshl_add_u32 v124, v4, 4, v124')
    A('s_lshl_b32 s16, s3, 18')
    A(f's_lshl_b32 s17, s{S_H}, 8')
    A('s_add_u32 s16, s16, s17')
    for i in range(8):
        A(f's_add_u32 s17, s16, {i*4*8192}')
        A.vm_issue(f'buffer_load_dwordx4 v[{16+4*i}:{19+4*i}], v124, {srd("wq")}, s17 offen', f'wq{i}')
    A(f's_sub_u32 s18, s2, {WORK0}')
    A(f's_cmp_lt_u32 s18, {NWORK}')
    A('s_cbranch_scc0 L_p2')
    A('v_lshrrev_b32 v124, 2, v1')
    A('v_mul_u32_u24 v124, 3584, v124')
    A('v_and_b32 v125, 3, v1')
    A('v_lshl_add_u32 v124, v125, 4, v124')
    A(f's_mul_i32 s16, s3, {32*3584}')
    A('s_lshl_b32 s17, s18, 6')
    A('s_add_u32 s16, s16, s17')
    A('s_lshl_b32 s19, s3, 11')
    for nm, lb in (('gate', L_GATE), ('up', L_UP)):
        for i in range(2):
            A(f's_add_u32 s17, s16, {i*16*3584}')
            A(f's_add_u32 s21, s19, {lb + i*1024}')
            A('s_mov_b32 m0, s21')
            A(f'buffer_load_dwordx4 v124, {srd(nm)}, s17 offen lds')
    A('s_lshl_b32 s17, s18, 15')
    A('s_add_u32 s17, s17, s19')
    for i in range(2):
        A(f's_add_u32 s22, s17, {i*1024}')
        A(f's_add_u32 s21, s19, {L_DOWN + i*1024}')
        A('s_mov_b32 m0, s21')
        A(f'buffer_load_dwordx4 v2, {srd("down")}, s22 offen lds')
    A.label('L_p2')
    A('s_nop 1')
    for j in range(g.P0):
        ring_issue(g, j)

def unpack8l(A, d, T):
    for k in range(4):
        A(f'v_lshlrev_b32 v{T[2*k]}, 16, v{d+k}')
        A(f'v_and_b32 v{T[2*k+1]}, 0xffff0000, v{d+k}')

def layernorm_l(A, x, T):
    s_, m = T[0], T[1]; d = T[2:10]; r, e = T[10], T[11]
    A(f'v_add_f32 v{s_}, v{x}, v{x+1}')
    for k in range(2, 8): A(f'v_add_f32 v{s_}, v{s_}, v{x+k}')
    allreduce_row(A, [s_]); allreduce_xrow(A, [s_], [r])
    A(f'v_mul_f32 v{m}, 0x3b000000, v{s_}')
    for k in range(8): A(f'v_sub_f32 v{d[k]}, v{x+k}, v{m}')
    A(f'v_mul_f32 v{s_}, v{d[0]}, v{d[0]}')
    for k in range(1, 8): A(f'v_fmac_f32 v{s_}, v{d[k]}, v{d[k]}')
    allreduce_row(A, [s_]); allreduce_xrow(A, [s_], [r])
    A(f'v_mul_f32 v{s_}, 0x3b000000, v{s_}')
    bf16r(A, s_)
    A(f'v_add_f32 v{s_}, 0x3727c5ac, v{s_}')
    bf16r(A, s_)
    A(f'v_sqrt_f32 v{s_}, v{s_}')
    bf16r(A, s_)
    bf16r(A, m)
    for k in range(8): A(f'v_sub_f32 v{d[k]}, v{x+k}, v{m}')
    for k in range(8): bf16r(A, d[k])
    for k in range(8): fdiv(A, x+k, d[k], s_, r, e)
    for k in range(8): bf16r(A, x+k)

def h_phase(g):
    A = g.A
    A.vm_wait('x')
    unpack8(A, 112, 4)
    T = [12, 13, 14, 15, 112, 113, 114, 115, 124, 125, 126, 127]
    layernorm_l(A, 4, T)
    A.vm_wait('ca')
    unpack8l(A, 120, T[:8])
    for k in range(8): A(f'v_add_f32 v{T[k]}, 1.0, v{T[k]}')
    for k in range(8): bf16r(A, T[k])
    for k in range(8): A(f'v_mul_f32 v{4+k}, v{4+k}, v{T[k]}')
    for k in range(8): bf16r(A, 4+k)
    unpack8l(A, 116, T[:8])
    for k in range(8): A(f'v_add_f32 v{4+k}, v{4+k}, v{T[k]}')
    for k in range(8): bf16r(A, 4+k)
    A('v_lshlrev_b32 v124, 5, v1')
    A(f'v_add_u32 v124, {L_ACT}, v124')
    A('ds_write_b128 v124, v[4:7]')
    A('ds_write_b128 v124, v[8:11] offset:16')
    A('s_waitcnt lgkmcnt(0)')

def q_phase(g):
    A = g.A
    A('s_lshl_b32 s16, s3, 7')
    A(f's_add_u32 s16, s16, {L_ACT}')
    A('v_lshlrev_b32 v8, 2, v3')
    A('v_add_u32 v8, s16, v8')
    for i in range(8): A(f'ds_read_b32 v{120+i}, v8 offset:{16*i}')
    for k in range(8): A(f'v_mov_b32 v{8+k}, 0')
    A('s_waitcnt lgkmcnt(0)')
    for i in range(8):
        A.vm_wait(f'wq{i}')
        unpack8(A, 16+4*i, 112)
        for k in range(8): A(f'v_fmac_f32 v{8+k}, v{120+i}, v{112+k}')
    allreduce_xrow(A, list(range(8, 16)), list(range(112, 120)))
    A('s_lshl_b32 s16, s3, 9')
    A(f's_add_u32 s16, s16, {L_RED}')
    A('v_and_b32 v112, 15, v1')
    A('v_lshlrev_b32 v112, 5, v112')
    A('v_add_u32 v112, s16, v112')
    A('ds_write_b128 v112, v[8:11]')
    A('ds_write_b128 v112, v[12:15] offset:16')
    A('s_waitcnt lgkmcnt(0)')
    A('s_barrier')
    A('v_and_b32 v112, 15, v1')
    A('v_lshlrev_b32 v112, 5, v112')
    A(f'v_add_u32 v112, {L_RED}, v112')
    A('ds_read_b128 v[8:11], v112')
    A('ds_read_b128 v[12:15], v112 offset:16')
    for w in range(1, 16):
        base = 16 + 8*((w-1) % 4)
        A(f'ds_read_b128 v[{base}:{base+3}], v112 offset:{w*512}')
        A(f'ds_read_b128 v[{base+4}:{base+7}], v112 offset:{w*512+16}')
        if w % 4 == 0 or w == 15:
            A('s_waitcnt lgkmcnt(0)')
            lo = w-3 if w % 4 == 0 else 13
            for ww in range(lo, w+1):
                bb = 16 + 8*((ww-1) % 4)
                for k in range(8): A(f'v_add_f32 v{8+k}, v{8+k}, v{bb+k}')
    for k in range(4): A(f'v_cvt_pk_bf16_f32 v{4+k}, v{8+2*k}, v{9+2*k}')

def dump_regs(A, regs, idx, lanes=64):
    A('s_lshl_b32 s16, s2, 4')
    A('s_add_u32 s16, s16, s3')
    A(f's_mul_i32 s16, s16, {len(regs)*256}')
    A(f's_add_u32 s16, s16, {WS_DBG}')
    A('v_lshlrev_b32 v3, 2, v1')
    for k, r in enumerate(regs):
        A(f'buffer_store_dword v{r}, v3, {srd("ws")}, s16 offen offset:{k*256}')
    A('s_waitcnt vmcnt(0)')

def body(g):
    A = g.A
    A.inflight = []
    stamp(g, 0)
    prologue(g)
    stamp(g, 1)
    h_phase(g)
    stamp(g, 2)
    q_phase(g)
    stamp(g, 3)
    import stream
    stream.run(g, False)
    import worker
    worker.run(g)
```

```python
from gen import *
from phases import unpack8, ring_issue, ring_seq, ring_tagname, NK, NSTREAM, poll, dump_regs
import phases

S0 = 16
OACC = 8

def run(g, service):
    A = g.A; D = g.D
    tag = 's' if service else 'n'
    for j in range(g.P0, D): ring_issue(g, j)
    nxt = [D]
    def issue_more(n):
        for _ in range(n):
            if nxt[0] < NSTREAM:
                ring_issue(g, nxt[0]); nxt[0] += 1
    def slot(j): return 48 + 4*(j % D)
    T = [112, 113, 114, 115]
    for g4 in range(NK//4):
        js = [4*g4+k for k in range(4)]
        A.vm_wait(ring_tagname(js[3]))
        for k in range(4):
            for u, j in enumerate(js):
                src = 'v%d' % T[u] if k else '0'
                A(f'v_dot2_f32_bf16 v{T[u]}, v{slot(j)+k}, v{4+k}, {src}')
        issue_more(4)
        for sh in (8, 4, 2):
            for u in range(4):
                A(f'v_add_f32_dpp v{T[u]}, v{T[u]}, v{T[u]} row_ror:{sh} row_mask:0xf bank_mask:0xf')
        for u, j in enumerate(js):
            A(f'v_add_f32_dpp v{S0+j}, v{T[u]}, v{T[u]} row_ror:1 row_mask:0xf bank_mask:0xf')
    stamp(g, 4)
    A(f's_mov_b32 s16, {SCALE:#x}')
    for i in range(NK):
        A(f'v_cvt_pk_bf16_f32 v{S0+i}, v{S0+i}, v{S0+i}')
    for i in range(NK):
        A(f'v_and_b32 v{S0+i}, 0xffff0000, v{S0+i}')
    for i in range(NK):
        A(f'v_mul_f32 v{S0+i}, s16, v{S0+i}')
    for i in range(NK):
        A(f'v_cvt_pk_bf16_f32 v{S0+i}, v{S0+i}, v{S0+i}')
    for i in range(NK):
        A(f'v_and_b32 v{S0+i}, 0xffff0000, v{S0+i}')
    M = 116; L = 117
    A(f'v_max3_f32 v{M}, v{S0}, v{S0+1}, v{S0+2}')
    for i in range(3, NK-1, 2):
        A(f'v_max3_f32 v{M}, v{M}, v{S0+i}, v{S0+i+1}')
    A(f'v_max_f32 v{M}, v{M}, v{S0+NK-1}')
    allreduce_xrow(A, [M], [118], op='max')
    A(f's_mov_b32 s16, {LOG2E:#x}')
    for i in range(NK):
        A(f'v_sub_f32 v{S0+i}, v{S0+i}, v{M}')
    for i in range(NK):
        A(f'v_mul_f32 v{S0+i}, s16, v{S0+i}')
    for i in range(NK):
        A(f'v_exp_f32 v{S0+i}, v{S0+i}')
    A(f'v_add_f32 v{L}, v{S0}, v{S0+1}')
    for i in range(2, NK):
        A(f'v_add_f32 v{L}, v{L}, v{S0+i}')
    allreduce_xrow(A, [L], [118])
    A('s_lshl_b32 s16, s3, 3')
    A(f's_add_u32 s16, s16, {L_MISC}')
    A('v_mov_b32 v118, s16')
    A(f'ds_write_b64 v118, v[{M}:{L}]')
    for k in range(8): A(f'v_mov_b32 v{OACC+k}, 0')
    stamp(g, 5)
    for i in range(NK):
        j = NK + i
        A.vm_wait(ring_tagname(j))
        unpack8(A, slot(j), 120)
        issue_more(1)
        for k in range(8):
            A(f'v_fmac_f32 v{OACC+k}, v{S0+i}, v{120+k}')
        if i == 7:
            A('s_waitcnt lgkmcnt(0)')
            A('s_barrier')
            A(f'v_mov_b32 v118, {L_MISC}')
            for k in range(8):
                A(f'ds_read_b128 v[120:123], v118 offset:{16*k}')
                A('s_waitcnt lgkmcnt(0)')
                if k == 0:
                    A('v_max_f32 v112, v120, v122')
                else:
                    A('v_max3_f32 v112, v112, v120, v122')
            A(f's_mov_b32 s16, {LOG2E:#x}')
            A('v_mov_b32 v113, 0')
            for k in range(8):
                A(f'ds_read_b128 v[120:123], v118 offset:{16*k}')
                A('s_waitcnt lgkmcnt(0)')
                A('v_sub_f32 v124, v120, v112')
                A('v_sub_f32 v125, v122, v112')
                A('v_mul_f32 v124, s16, v124')
                A('v_mul_f32 v125, s16, v125')
                A('v_exp_f32 v124, v124')
                A('v_exp_f32 v125, v125')
                A('v_fmac_f32 v113, v121, v124')
                A('v_fmac_f32 v113, v123, v125')
            A('s_cmp_eq_u32 s3, 0')
            A(f's_cbranch_scc0 L_nopub_{tag}')
            A('s_lshl_b32 s16, s2, 3')
            A(f's_add_u32 s16, s16, {WS_EXCH}')
            A('v_mov_b32 v118, 0')
            A('s_mov_b64 exec, 1')
            A(f'buffer_store_dwordx2 v[112:113], v118, {srd("ws")}, s16 offen sc1')
            A('s_mov_b64 exec, -1')
            A.label(f'L_nopub_{tag}')
            A('s_nop 1')

        if i == 20:
            A('s_xor_b32 s16, s2, 8')
            A('s_lshl_b32 s16, s16, 3')
            A(f's_add_u32 s16, s16, {WS_EXCH}')
            A('v_mov_b32 v118, 0')
            A.vm_issue(f'buffer_load_dwordx2 v[114:115], v118, {srd("ws")}, s16 offen sc1', 'pg')
    if g.stop == 2:
        A.vm_wait_all()
        dump_regs(A, list(range(8, 16)) + [116, 117, 112, 113], 0)
        A('s_branch L_END')
        return
    epilogue(g, service)

def epilogue(g, service):
    A = g.A
    tag = 's' if service else 'n'
    stamp(g, 6)
    allreduce_xrow(A, list(range(8, 16)), list(range(120, 128)))
    A.vm_wait('pg')
    A('v_cmp_eq_u32 vcc, 0, v115')
    A('s_nop 3')
    A('s_cmp_eq_u64 vcc, 0')
    A(f's_cbranch_scc1 L_pg_ok_{tag}')
    A('s_mov_b32 s20, 0')
    A.label(f'L_pg_poll_{tag}')
    A('s_sleep 2')
    A('s_xor_b32 s16, s2, 8')
    A('s_lshl_b32 s16, s16, 3')
    A(f's_add_u32 s16, s16, {WS_EXCH}')
    A('v_mov_b32 v118, 0')
    A(f'buffer_load_dwordx2 v[114:115], v118, {srd("ws")}, s16 offen sc1')
    A('s_waitcnt vmcnt(0)')
    A('v_cmp_eq_u32 vcc, 0, v115')
    A('s_nop 3')
    A('s_cmp_eq_u64 vcc, 0')
    A(f's_cbranch_scc1 L_pg_ok_{tag}')
    A('s_add_u32 s20, s20, 1')
    A('s_cmp_lt_u32 s20, 100000')
    A(f's_cbranch_scc1 L_pg_poll_{tag}')
    A.label(f'L_pg_ok_{tag}')
    A('s_nop 1')
    A(f's_mov_b32 s16, {LOG2E:#x}')
    A('v_max_f32 v118, v112, v114')
    A('v_sub_f32 v120, v112, v118')
    A('v_sub_f32 v121, v114, v118')
    A('v_sub_f32 v122, v116, v118')
    A('v_mul_f32 v120, s16, v120')
    A('v_mul_f32 v121, s16, v121')
    A('v_mul_f32 v122, s16, v122')
    A('v_exp_f32 v120, v120')
    A('v_exp_f32 v121, v121')
    A('v_exp_f32 v122, v122')
    A('v_mul_f32 v120, v113, v120')
    A('v_fmac_f32 v120, v115, v121')
    fdiv(A, 123, 122, 120, 124, 125)
    for k in range(8): A(f'v_mul_f32 v{8+k}, v{8+k}, v123')
    A('s_lshl_b32 s16, s3, 9')
    A(f's_add_u32 s16, s16, {L_RED}')
    A('v_and_b32 v118, 15, v1')
    A('v_lshlrev_b32 v118, 5, v118')
    A('v_add_u32 v118, s16, v118')
    A('ds_write_b128 v118, v[8:11]')
    A('ds_write_b128 v118, v[12:15] offset:16')
    A('s_waitcnt lgkmcnt(0)')
    A('s_barrier')
    stamp(g, 7)
    A('s_lshl_b32 s16, s3, 5')
    A(f's_add_u32 s16, s16, {L_RED}')
    A('v_mov_b32 v118, s16')
    A('ds_read_b128 v[8:11], v118')
    A('ds_read_b128 v[12:15], v118 offset:16')
    for w in range(1, 16):
        base = 16 + 8*((w-1) % 4)
        A(f'ds_read_b128 v[{base}:{base+3}], v118 offset:{w*512}')
        A(f'ds_read_b128 v[{base+4}:{base+7}], v118 offset:{w*512+16}')
        if w % 4 == 0 or w == 15:
            A('s_waitcnt lgkmcnt(0)')
            lo = w-3 if w % 4 == 0 else 13
            for ww in range(lo, w+1):
                bb = 16 + 8*((ww-1) % 4)
                for k in range(8): A(f'v_add_f32 v{8+k}, v{8+k}, v{bb+k}')
    for k in range(8): A(f'v_mov_b32 v{16+k}, 0')
    D = g.D
    for i in range(8):
        j = 2*NK + i
        A.vm_wait(ring_tagname(j))
        unpack8(A, 48 + 4*(j % D), 120)
        for k in range(8): A(f'v_fmac_f32 v{16+k}, v{8+i}, v{120+k}')
    A('s_lshl_b32 s16, s3, 11')
    A(f's_add_u32 s16, s16, {L_RED2}')
    A('v_lshlrev_b32 v118, 5, v1')
    A('v_add_u32 v118, s16, v118')
    A('ds_write_b128 v118, v[16:19]')
    A('ds_write_b128 v118, v[20:23] offset:16')
    A('s_waitcnt lgkmcnt(0)')
    A('s_barrier')
    stamp(g, 8)
    A('s_cmp_lt_u32 s3, 8')
    A(f's_cbranch_scc0 L_noatt_{tag}')
    A('v_lshlrev_b32 v118, 2, v0')
    A(f'v_add_u32 v119, {L_RED2}, v118')
    A('ds_read_b32 v8, v119')
    for w in range(1, 16):
        A(f'ds_read_b32 v{8+w}, v119 offset:{w*2048}')
    A('s_waitcnt lgkmcnt(0)')
    for w in range(1, 16): A(f'v_add_f32 v8, v8, v{8+w}')
    A(f's_lshl_b32 s16, s{S_B}, 11')
    A(f's_add_u32 s16, s16, {WS_ATT}')
    A(f'buffer_atomic_add_f32 v8, v118, {srd("ws")}, s16 offen')
    A('s_waitcnt vmcnt(0)')
    A.label(f'L_noatt_{tag}')
    A('s_nop 1')
    A('s_barrier')
    A('s_cmp_eq_u32 s3, 0')
    A(f's_cbranch_scc0 L_nosig_{tag}')
    A('s_and_b32 s16, s2, 7')
    A('s_lshl_b32 s16, s16, 7')
    A(f's_add_u32 s16, s16, {WS_CNT}')
    A('v_mov_b32 v8, 1')
    A('v_mov_b32 v9, 0')
    A('s_mov_b64 exec, 1')
    A(f'buffer_atomic_add v8, v9, {srd("ws")}, s16 offen')
    A('s_mov_b64 exec, -1')
    A.label(f'L_nosig_{tag}')
    A('s_nop 1')
    A.inflight = []
    stamp(g, 9)
    A('s_branch L_WORK')
```

```python
from gen import *
from phases import unpack8, poll, layernorm, dump_regs

def run(g):
    A = g.A
    A.label('L_WORK')
    A.inflight = []
    A(f's_sub_u32 s18, s2, {WORK0}')
    A(f's_cmp_lt_u32 s18, {NWORK}')
    A('s_cbranch_scc0 L_END')
    A('s_cmp_lt_u32 s3, 4')
    A('s_cbranch_scc0 L_w_nopf')
    A('s_mul_i32 s16, s3, 6144')
    A(f'buffer_load_dwordx4 v[16:19], v2, {srd("ws")}, s16 offen offset:2048')
    A(f'buffer_load_dwordx4 v[20:23], v2, {srd("ws")}, s16 offen offset:3072')
    A('s_add_u32 s16, s16, 4096')
    A(f'buffer_load_dwordx4 v[24:27], v2, {srd("ws")}, s16 offen')
    A('s_lshl_b32 s16, s3, 10')
    A(f'buffer_load_dwordx4 v[28:31], v2, {srd("x")}, s16 offen')
    A.label('L_w_nopf')
    A('s_nop 1')
    A('s_cmp_eq_u32 s3, 0')
    A('s_cbranch_scc0 L_w_nopoll')
    A('v_and_b32 v125, 7, v1')
    A('v_lshlrev_b32 v125, 7, v125')
    A(f'v_add_u32 v125, {WS_CNT}, v125')
    poll(A, 'f2', 'ws', 125, 32, limit=2000000, sleep=0)
    A.label('L_w_nopoll')
    A('s_barrier')
    stamp(g, 10)
    A('s_cmp_lt_u32 s3, 4')
    A('s_cbranch_scc0 L_w_noln')
    A('v_lshlrev_b32 v3, 5, v1')
    A('s_lshl_b32 s16, s3, 11')
    A(f's_add_u32 s16, s16, {WS_ATT}')
    A(f'buffer_load_dwordx4 v[8:11], v3, {srd("ws")}, s16 offen sc1')
    A(f'buffer_load_dwordx4 v[12:15], v3, {srd("ws")}, s16 offen offset:16 sc1')
    A('s_waitcnt vmcnt(0)')
    unpack8(A, 16, 32)
    unpack8(A, 20, 40)
    unpack8(A, 24, 48)
    unpack8(A, 28, 56)
    for k in range(8): bf16r(A, 8+k)
    for k in range(8): A(f'v_mul_f32 v{8+k}, v{8+k}, v{32+k}')
    for k in range(8): bf16r(A, 8+k)
    for k in range(8): A(f'v_add_f32 v{8+k}, v{8+k}, v{56+k}')
    for k in range(8): bf16r(A, 8+k)
    A('s_lshl_b32 s16, s3, 11')
    A(f's_add_u32 s16, s16, {L_RED}')
    A('v_add_u32 v64, s16, v3')
    A('ds_write_b128 v64, v[8:11]')
    A('ds_write_b128 v64, v[12:15] offset:16')
    layernorm(A, 8, 64)
    for k in range(8): A(f'v_add_f32 v{48+k}, 1.0, v{48+k}')
    for k in range(8): bf16r(A, 48+k)
    for k in range(8): A(f'v_mul_f32 v{8+k}, v{8+k}, v{48+k}')
    for k in range(8): bf16r(A, 8+k)
    for k in range(8): A(f'v_add_f32 v{8+k}, v{8+k}, v{40+k}')
    for k in range(8): bf16r(A, 8+k)
    A('s_lshl_b32 s16, s3, 2')
    A(f's_add_u32 s16, s16, {L_ACT}')
    A('v_lshlrev_b32 v64, 7, v1')
    A('v_add_u32 v64, s16, v64')
    for k in range(8): A(f'ds_write_b32 v64, v{8+k} offset:{16*k}')
    A('s_waitcnt lgkmcnt(0)')
    A.label('L_w_noln')
    A('s_barrier')
    stamp(g, 11)
    A('v_and_b32 v3, 31, v0')
    A('v_lshrrev_b32 v4, 5, v0')
    A('v_and_b32 v5, 15, v3')
    A('v_lshlrev_b32 v5, 2, v5')
    A('v_lshl_add_u32 v5, v4, 10, v5')
    A('v_lshrrev_b32 v6, 4, v3')
    A('v_lshlrev_b32 v6, 15, v6')
    A('v_add_u32 v5, v5, v6')
    A('v_lshlrev_b32 v6, 8, v4')
    A(f'v_add_u32 v6, {L_ACT}, v6')
    for k in range(8): A(f'v_mov_b32 v{8+k}, 0')
    for r0 in range(0, 16, 4):
        for r in range(r0, r0+4):
            u = r - r0
            A(f'ds_read_b32 v{16+u}, v5 offset:{r*64}')
            A(f'ds_read_b128 v[{24+4*u}:{27+4*u}], v6 offset:{r*16}')
        A('s_waitcnt lgkmcnt(0)')
        for r in range(r0, r0+4):
            u = r - r0
            A(f'v_lshlrev_b32 v20, 16, v{16+u}')
            A(f'v_and_b32 v21, 0xffff0000, v{16+u}')
            for b in range(4):
                A(f'v_fmac_f32 v{8+2*b}, v{24+4*u+b}, v20')
                A(f'v_fmac_f32 v{9+2*b}, v{24+4*u+b}, v21')
    for k in range(8): A(f'v_mov_b32 v{40+k}, v{8+k}')
    for k in range(8): A(f'v_permlane32_swap_b32 v{8+k}, v{40+k}')
    for k in range(8): A(f'v_add_f32 v{8+k}, v{8+k}, v{40+k}')
    A('s_lshl_b32 s16, s3, 10')
    A(f's_add_u32 s16, s16, {L_RED2}')
    A('v_lshlrev_b32 v5, 5, v3')
    A('v_add_u32 v5, s16, v5')
    A('ds_write_b128 v5, v[8:11]')
    A('ds_write_b128 v5, v[12:15] offset:16')
    A('s_waitcnt lgkmcnt(0)')
    A('s_barrier')
    A('s_cmp_eq_u32 s3, 0')
    A('s_cbranch_scc0 L_w_noact')
    A('v_and_b32 v3, 15, v1')
    A('v_lshrrev_b32 v4, 4, v1')
    A('v_lshlrev_b32 v5, 5, v3')
    A('v_lshl_add_u32 v5, v4, 3, v5')
    A(f'v_add_u32 v5, {L_RED2}, v5')
    A('ds_read_b64 v[8:9], v5')
    A('ds_read_b64 v[10:11], v5 offset:512')
    for w in range(1, 16):
        u = (w-1) % 4
        A(f'ds_read_b64 v[{16+4*u}:{17+4*u}], v5 offset:{w*1024}')
        A(f'ds_read_b64 v[{18+4*u}:{19+4*u}], v5 offset:{w*1024+512}')
        if w % 4 == 0 or w == 15:
            A('s_waitcnt lgkmcnt(0)')
            lo = w-3 if w % 4 == 0 else 13
            for ww in range(lo, w+1):
                uu = (ww-1) % 4
                for k in range(4): A(f'v_add_f32 v{8+k}, v{8+k}, v{16+4*uu+k}')
    for k in range(4): bf16r(A, 8+k)
    A('s_mov_b32 s16, 0x3d372713')
    A('s_mov_b32 s17, 0xc0135761')
    for k in range(2):
        A(f'v_mul_f32 v{16+k}, v{8+k}, v{8+k}')
        A(f'v_mul_f32 v{16+k}, s16, v{16+k}')
        A(f'v_fma_f32 v{16+k}, v{16+k}, v{8+k}, v{8+k}')
        A(f'v_mul_f32 v{16+k}, s17, v{16+k}')
        A(f'v_min_f32 v{16+k}, 0x42fc0000, v{16+k}')
        A(f'v_exp_f32 v{16+k}, v{16+k}')
        A(f'v_add_f32 v{16+k}, 1.0, v{16+k}')
        A(f'v_rcp_f32 v{18+k}, v{16+k}')
        A(f'v_fma_f32 v{20+k}, -v{16+k}, v{18+k}, 1.0')
        A(f'v_fma_f32 v{18+k}, v{20+k}, v{18+k}, v{18+k}')
        A(f'v_mul_f32 v{8+k}, v{8+k}, v{18+k}')
        bf16r(A, 8+k)
        A(f'v_mul_f32 v{8+k}, v{8+k}, v{10+k}')
        bf16r(A, 8+k)
    A('v_lshlrev_b32 v5, 5, v3')
    A('v_lshl_add_u32 v5, v4, 2, v5')
    A(f'v_add_u32 v5, {L_MISC}, v5')
    A('ds_write_b32 v5, v8')
    A('ds_write_b32 v5, v9 offset:16')
    A('s_waitcnt lgkmcnt(0)')
    A.label('L_w_noact')
    A('s_barrier')
    stamp(g, 12)
    A('v_and_b32 v3, 255, v0')
    A('v_lshrrev_b32 v4, 8, v0')
    A('v_lshlrev_b32 v5, 2, v3')
    A(f'v_add_u32 v5, {L_DOWN}, v5')
    A('v_lshlrev_b32 v6, 2, v4')
    A(f'v_add_u32 v6, {L_MISC}, v6')
    A('v_mov_b32 v8, 0')
    A('v_mov_b32 v9, 0')
    for j0 in range(0, 32, 8):
        for j in range(j0, j0+8):
            u = j - j0
            A(f'ds_read_b32 v{16+u}, v5 offset:{j*1024}')
            A(f'ds_read_b32 v{24+u}, v6 offset:{j*16}')
        A('s_waitcnt lgkmcnt(0)')
        for j in range(j0, j0+8):
            u = j - j0
            A(f'v_lshlrev_b32 v10, 16, v{16+u}')
            A(f'v_and_b32 v11, 0xffff0000, v{16+u}')
            A(f'v_fmac_f32 v8, v{24+u}, v10')
            A(f'v_fmac_f32 v9, v{24+u}, v11')
    A('v_lshlrev_b32 v5, 3, v0')
    A('s_and_b32 s16, s2, 3')
    A('s_lshl_b32 s16, s16, 13')
    A(f's_add_u32 s16, s16, {WS_DN}')
    A(f'buffer_atomic_add_f32 v8, v5, {srd("ws")}, s16 offen')
    A(f'buffer_atomic_add_f32 v9, v5, {srd("ws")}, s16 offen offset:4')
    A('s_waitcnt vmcnt(0)')
    A('s_barrier')
    A('s_cmp_eq_u32 s3, 0')
    A('s_cbranch_scc0 L_w_notick')
    A('v_mov_b32 v8, 1')
    A('v_mov_b32 v9, 0')
    A(f's_mov_b32 s16, {WS_CNT+0x400}')
    A('s_mov_b64 exec, 1')
    A(f'buffer_atomic_add v8, v9, {srd("ws")}, s16 offen sc0')
    A('s_waitcnt vmcnt(0)')
    A(f'v_mov_b32 v9, {L_MISC+0x200}')
    A('ds_write_b32 v9, v8')
    A('s_waitcnt lgkmcnt(0)')
    A('s_mov_b64 exec, -1')
    A.label('L_w_notick')
    A('s_barrier')
    stamp(g, 13)
    A(f'v_mov_b32 v9, {L_MISC+0x200}')
    A('ds_read_b32 v8, v9')
    A('s_waitcnt lgkmcnt(0)')
    A('v_readfirstlane_b32 s16, v8')
    A('s_nop 3')
    A(f's_cmp_eq_u32 s16, {NWORK-1}')
    A('s_cbranch_scc0 L_END')
    A('v_lshlrev_b32 v5, 3, v0')
    A(f's_mov_b32 s16, {WS_DN}')
    A(f'buffer_load_dwordx2 v[8:9], v5, {srd("ws")}, s16 offen sc1')
    A(f's_mov_b32 s16, {WS_DN+0x2000}')
    A(f'buffer_load_dwordx2 v[16:17], v5, {srd("ws")}, s16 offen sc1')
    A(f's_mov_b32 s16, {WS_DN+0x4000}')
    A(f'buffer_load_dwordx2 v[18:19], v5, {srd("ws")}, s16 offen sc1')
    A(f's_mov_b32 s16, {WS_DN+0x6000}')
    A(f'buffer_load_dwordx2 v[20:21], v5, {srd("ws")}, s16 offen sc1')
    A('v_mul_u32_u24 v6, 6144, v4')
    A('v_lshl_add_u32 v6, v3, 2, v6')
    A('s_mov_b32 s16, 5120')
    A(f'buffer_load_dword v10, v6, {srd("ws")}, s16 offen sc1')
    A(f'v_add_u32 v7, {L_RED}, v5')
    A('ds_read_b64 v[12:13], v7')
    A('s_waitcnt vmcnt(0) lgkmcnt(0)')
    A('v_add_f32 v8, v8, v16\nv_add_f32 v9, v9, v17\nv_add_f32 v18, v18, v20\nv_add_f32 v19, v19, v21\nv_add_f32 v8, v8, v18\nv_add_f32 v9, v9, v19')
    A('v_lshlrev_b32 v14, 16, v10')
    A('v_and_b32 v15, 0xffff0000, v10')
    bf16r(A, 8); bf16r(A, 9)
    A('v_mul_f32 v8, v8, v14')
    A('v_mul_f32 v9, v9, v15')
    bf16r(A, 8); bf16r(A, 9)
    A('v_add_f32 v8, v8, v12')
    A('v_add_f32 v9, v9, v13')
    A('v_cvt_pk_bf16_f32 v8, v8, v9')
    A('v_lshlrev_b32 v5, 2, v0')
    A(f'buffer_store_dword v8, v5, {srd("out")}, 0 offen')
    stamp(g, 14)
```

```python
import sys, argparse
sys.path.insert(0, 'work')
from asmlib import Asm

KN = 'adaLN_cond__mha_block_cached__geglu_ffn__decode_kernel'
PRE = 'adaln_pre_kernel'
WS_MOD  = 0x0000
WS_EXCH = 0x8000
WS_CNT  = 0x9000
WS_ATT  = 0xA000
WS_DN   = 0xC000
WS_ZEND = 0x14000
WS_DBG  = 0x100000
WS_SIZE = 0x1000000
L_GATE = 0x00000; L_UP = 0x08000; L_DOWN = 0x10000
L_RED  = 0x18000
L_RED2 = 0x1A000
L_ACT  = 0x22000
L_MISC = 0x24000
LDS_BYTES = 0x24400
NPROD = 96
WORK0 = 96; NWORK = 56
LOG2E = 0x3fb8aa3b
SCALE = 0x3db504f3

S_G, S_W = 2, 3
SRD = dict(x=44, K=48, V=52, wq=56, wo=60, gate=64, up=68, down=72, c=76, wmod=80, out=84, dbg=88, ws=92)
SIZES = dict(x=4096, K=1<<27, V=1<<27, wq=4<<20, wo=4<<20, gate=512*1792*2, up=512*1792*2, down=1792*512*2, c=4096, wmod=512*3072*2, out=4096, dbg=256, ws=WS_SIZE)
def srd(n): b = SRD[n]; return f's[{b}:{b+3}]'
S_B, S_H, S_HALF, S_KV = 96, 97, 98, 99

def bf16r(A, v, t=None):
    A(f'v_cvt_pk_bf16_f32 v{v}, v{v}, v{v}')
    A(f'v_and_b32 v{v}, 0xffff0000, v{v}')

def allreduce_row(A, regs, op='add'):
    for sh in (8, 4, 2, 1):
        for r in regs:
            A(f'v_{op}_f32_dpp v{r}, v{r}, v{r} row_ror:{sh} row_mask:0xf bank_mask:0xf')

def allreduce_xrow(A, regs, tmps, op='add'):
    for sw in ('v_permlane16_swap_b32', 'v_permlane32_swap_b32'):
        for r, t in zip(regs, tmps): A(f'v_mov_b32 v{t}, v{r}')
        for r, t in zip(regs, tmps): A(f'{sw} v{r}, v{t}')
        for r, t in zip(regs, tmps): A(f'v_{op}_f32 v{r}, v{r}, v{t}')

def fdiv(A, q, x, d, r, e):
    A(f'v_rcp_f32 v{r}, v{d}')
    A(f'v_fma_f32 v{e}, -v{d}, v{r}, 1.0')
    A(f'v_fma_f32 v{r}, v{e}, v{r}, v{r}')
    A(f'v_mul_f32 v{q}, v{x}, v{r}')
    A(f'v_fma_f32 v{e}, -v{q}, v{d}, v{x}')
    A(f'v_fma_f32 v{q}, v{e}, v{r}, v{q}')

STAMP_BASE = 0x800000
def stamp(g, idx):
    if not g.stamps: return
    A = g.A
    A('s_memrealtime s[24:25]')
    A('s_lshl_b32 s26, s2, 4')
    A('s_add_u32 s26, s26, s3')
    A('s_lshl_b32 s26, s26, 7')
    A(f's_add_u32 s26, s26, {STAMP_BASE + idx*4}')
    A('s_waitcnt lgkmcnt(0)')
    A('v_mov_b32 v127, s24')
    A('v_mov_b32 v126, 0')
    A('s_mov_b64 exec, 1')
    A(f'buffer_store_dword v127, v126, {srd("ws")}, s26 offen')
    A('s_mov_b64 exec, -1')

class G:
    def __init__(self, stop=99, depth=16, stamps=False, p0=6):
        self.A = Asm(); self.stop = stop; self.D = depth; self.stamps = stamps; self.P0 = p0
    def header(self):
        A = self.A
        A.raw(f'; @launch kernel={PRE} grid=({NPROD},1,1) block=(1024,1,1) lds=16384')
        A.raw(f'; @launch kernel={KN} grid=(256,1,1) block=(1024,1,1) lds={LDS_BYTES}')
        A.raw('.amdgcn_target "amdgcn-amd-amdhsa--gfx950"')
        A.raw('.text')
        import phases
        phases.pre_kernel(self)
        A.hist = []
        A.raw(f'.globl {KN}\n.p2align 8\n.type {KN},@function\n{KN}:')
    def footer(self):
        A = self.A
        A.label('L_END')
        A('s_endpgm')
        A.raw('.section .rodata,"a"\n.p2align 6')
        A.raw(f'.amdhsa_kernel {KN}')
        A.raw('  .amdhsa_next_free_vgpr 128\n  .amdhsa_next_free_sgpr 102\n  .amdhsa_accum_offset 128')
        A.raw('  .amdhsa_group_segment_fixed_size 0\n  .amdhsa_kernarg_size 112\n  .amdhsa_user_sgpr_count 2\n  .amdhsa_user_sgpr_kernarg_segment_ptr 1\n  .amdhsa_system_sgpr_workgroup_id_x 1')
        A.raw('.end_amdhsa_kernel')
        A.raw(f'.amdhsa_kernel {PRE}')
        A.raw('  .amdhsa_next_free_vgpr 128\n  .amdhsa_next_free_sgpr 102\n  .amdhsa_accum_offset 128')
        A.raw('  .amdhsa_group_segment_fixed_size 0\n  .amdhsa_kernarg_size 112\n  .amdhsa_user_sgpr_count 2\n  .amdhsa_user_sgpr_kernarg_segment_ptr 1\n  .amdhsa_system_sgpr_workgroup_id_x 1')
        A.raw('.end_amdhsa_kernel')
    def setup(self):
        A = self.A
        A('s_cmp_ge_u32 s2, 256')
        A('s_cbranch_scc1 L_END')
        A('s_load_dwordx16 s[16:31], s[0:1], 0')
        A('s_load_dwordx8 s[32:39], s[0:1], 64')
        A('s_load_dwordx4 s[40:43], s[0:1], 96')
        A('v_lshrrev_b32 v1, 6, v0')
        A('v_readfirstlane_b32 s3, v1')
        A('v_and_b32 v1, 63, v0')
        A('v_lshlrev_b32 v2, 4, v1')
        A(f's_and_b32 s{S_H}, s2, 7')
        A('s_lshr_b32 s4, s2, 3')
        A(f's_and_b32 s{S_HALF}, s4, 1')
        A('s_lshr_b32 s5, s4, 1')
        A(f's_and_b32 s{S_B}, s5, 3')
        A('s_lshr_b32 s5, s4, 3')
        A('s_lshl_b32 s5, s5, 3')
        A(f's_or_b32 s{S_H}, s{S_H}, s5')
        A('s_waitcnt lgkmcnt(0)')
        order = ['x','K','V','wq','wo',None,'gate','up','down','c','wmod','out','dbg','ws']
        for i, n in enumerate(order):
            if n is None: continue
            b = SRD[n]; p = 16 + 2*i
            A(f's_mov_b32 s{b}, s{p}')
            A(f's_and_b32 s{b+1}, s{p+1}, 0xffff')
            A(f's_mov_b32 s{b+2}, {SIZES[n]:#x}')
            A(f's_mov_b32 s{b+3}, 0x00020000')
        A(f's_lshl_b32 s4, s{S_B}, 5')
        A(f's_add_u32 s4, s4, s{S_H}')
        A('s_lshl_b32 s4, s4, 20')
        A(f's_lshl_b32 s5, s{S_HALF}, 19')
        A('s_add_u32 s4, s4, s5')
        A('s_lshl_b32 s5, s3, 15')
        A(f's_add_u32 s{S_KV}, s4, s5')

def build(stop=99, depth=16, stamps=False, p0=6):
    g = G(stop, depth, stamps, p0)
    g.header(); g.setup()
    import phases
    phases.body(g)
    g.footer()
    return g.A.text()

if __name__ == '__main__':
    ap = argparse.ArgumentParser()
    ap.add_argument('--stop', type=int, default=99)
    ap.add_argument('--depth', type=int, default=16)
    ap.add_argument('--stamps', type=int, default=0)
    ap.add_argument('--p0', type=int, default=6)
    ap.add_argument('-o', default='k.s')
    a = ap.parse_args()
    open(a.o, 'w').write(build(a.stop, a.depth, bool(a.stamps), a.p0))
    print('wrote', a.o)
```
